```python
import torch

def _softmax(x, axis=-1):
    return torch.softmax(x, dim=axis)
def _gelu(x):
    return torch.nn.functional.gelu(x, approximate="tanh")
def _silu(x):
    return torch.nn.functional.silu(x)
def _sigmoid(x):
    return torch.sigmoid(x)
def _layernorm(x, axis=-1, eps=1e-5):
    m = x.mean(dim=axis, keepdim=True)
    v = x.var(dim=axis, keepdim=True, unbiased=False)
    return (x - m) / torch.sqrt(v + eps)
def _scatter_add(tgt, idx, src, axis=0):
    return tgt.clone().index_add_(axis, idx, src)
def _segment_sum(src, seg, n):
    out = torch.zeros((n,) + src.shape[1:], dtype=src.dtype)
    return out.index_add_(0, seg, src)
def _pad(x, pw):
    flat = tuple(v for pair in reversed(pw) for v in pair)
    return torch.nn.functional.pad(x, flat)

kernel_name = 'concat_heads__ssm_conv_h3__linear_kernel_hedgehog__prompt'

def setup_inputs():

    _w = (lambda a: (lambda t: t.to(torch.bfloat16) if t.is_floating_point() else t)(torch.as_tensor(a)))
    def _A_setup():
        B, S, D = 1, 2048, 1024
        ks = 4
        return {
            "q": _w((lambda *s: torch.randn(*s, dtype=torch.bfloat16) * 0.05)(B, S, D)),
            "k": _w((lambda *s: torch.randn(*s, dtype=torch.bfloat16) * 0.8)(B, S, D)),
            "v": _w((lambda *s: torch.randn(*s, dtype=torch.bfloat16) * 0.8)(B, S, D)),
            "shift_k": _w((lambda *s: torch.randn(*s, dtype=torch.bfloat16) * 0.8)(D, ks) * 0.5),
            "ssm_k": _w((lambda *s: torch.randn(*s, dtype=torch.bfloat16) * 0.8)(D, S) * (1.0 / S ** 0.5)),
            "ssm_D": _w((lambda *s: torch.randn(*s, dtype=torch.bfloat16) * 0.8)(D)),
        }
    _A_in = _A_setup()

    def _B_setup():
        B, S, D, H = 1, 2048, 1024, 32
        Dh = D // H
        return {
            "x": _w((lambda *s: torch.randn(*s, dtype=torch.bfloat16) * 0.4)(B, S, D)),
            "wqkv": _w((lambda *s: torch.randn(*s, dtype=torch.bfloat16) * 0.4)(D, 3 * D)),
            "w_phi": _w((lambda *s: torch.randn(*s, dtype=torch.bfloat16) * 0.4)(H, Dh, Dh) * (Dh ** -0.5)),
            "wo": _w((lambda *s: torch.randn(*s, dtype=torch.bfloat16) * 0.05)(D, D)),
        }
    _B_in = _B_setup()

    return {
        "A_q": _A_in["q"],
        "A_k": _A_in["k"],
        "A_v": _A_in["v"],
        "A_shift_k": _A_in["shift_k"],
        "A_ssm_k": _A_in["ssm_k"],
        "A_ssm_D": _A_in["ssm_D"],
        "B_x": _B_in["x"],
        "B_wqkv": _B_in["wqkv"],
        "B_w_phi": _B_in["w_phi"],
        "B_wo": _B_in["wo"],
    }

def reference(A_q, A_k, A_v, A_shift_k, A_ssm_k, A_ssm_D, B_x, B_wqkv, B_w_phi, B_wo):
    def _A_ref(q, k, v, shift_k, ssm_k, ssm_D):
        B, S, D = q.shape
        ks = shift_k.shape[-1]
        k_pad = _pad(k, ((0, 0), (ks - 1, 0), (0, 0)))
        k_shift = torch.zeros_like(k)
        for t in range(ks):
            k_shift = k_shift + k_pad[:, t:t + S, :] * shift_k[:, ks - 1 - t][None, None, :]
        kv = k_shift * v
        L = 2 * S
        kv_pad = _pad(kv, ((0, 0), (0, S), (0, 0)))
        kf_pad = _pad(ssm_k, ((0, 0), (0, S)))
        kv_f = (lambda x, axes=(-2,-1): torch.fft.rfft2(x.float(), dim=axes))(kv_pad[:, None, :, :], axes=(1, 2))
        kf_f = (lambda x, axes=(-2,-1): torch.fft.rfft2(x.float(), dim=axes))(kf_pad[:, None, :], axes=(1, 2))
        kf_f = (lambda x, *d: x.permute(*d))(kf_f, 1, 2, 0)
        y_f = kv_f * kf_f[None, :, :, :]
        y = (lambda x, s, axes=(-2,-1): torch.fft.irfft2(x, s=s, dim=axes).to(torch.bfloat16))(y_f, (1, L), axes=(1, 2))[:, 0, :S, :]
        y = y + kv * ssm_D[None, None, :]
        return q * y

    def _B_ref(x, wqkv, w_phi, wo):
        B, S, D = x.shape
        H = 32; Dh = D // H
        qkv = (lambda x, *d: x.permute(*d))((x @ wqkv).reshape(B, S, 3, H, Dh), 2, 0, 3, 1, 4)
        q, k, v = qkv[0], qkv[1], qkv[2]
        pq = torch.einsum("bhsd,hdf->bhsf", q, w_phi)
        pk = torch.einsum("bhsd,hdf->bhsf", k, w_phi)
        phi_q = torch.concatenate([_softmax(pq, axis=-1), _softmax(-pq, axis=-1)], axis=-1)
        phi_k = torch.concatenate([_softmax(pk, axis=-1), _softmax(-pk, axis=-1)], axis=-1)
        kv = torch.einsum("bhsf,bhsd->bhfd", phi_k, v)
        z  = torch.einsum("bhsf->bhf", phi_k)
        num = torch.einsum("bhqf,bhfd->bhqd", phi_q, kv)
        den = torch.einsum("bhqf,bhf->bhq", phi_q, z)[..., None] + 1e-6
        o = num / den
        return (lambda x, *d: x.permute(*d))(o, 0, 2, 1, 3).reshape(B, S, D) @ wo

    a = _A_ref(A_q, A_k, A_v, A_shift_k, A_ssm_k, A_ssm_D)
    b = _B_ref(B_x, B_wqkv, B_w_phi, B_wo)
    return torch.concatenate([a, b], axis=-1)
```

```python
class Asm:
    def __init__(self):
        self.lines = []
        self.lbl = 0
    def __call__(self, s):
        for l in s.strip("\n").split("\n"):
            self.lines.append("    " + l.strip())
    def label(self, name):
        self.lines.append(name + ":")
    def newlabel(self, p="L"):
        self.lbl += 1
        return f"{p}_{self.lbl}"
    def raw(self, s):
        self.lines.append(s)
    def text(self):
        return "\n".join(self.lines) + "\n"

def vr(b, n=1):
    return f"v{b}" if n == 1 else f"v[{b}:{b+n-1}]"
def sr(b, n=1):
    return f"s{b}" if n == 1 else f"s[{b}:{b+n-1}]"
def ar(b, n=1):
    return f"a{b}" if n == 1 else f"a[{b}:{b+n-1}]"

def kernel_begin(A, name):
    A.raw(f".globl {name}")
    A.raw(".p2align 8")
    A.raw(f".type {name},@function")
    A.raw(f"{name}:")

def kernel_desc(name, vgpr, sgpr, accum=None):
    if accum is None:
        accum = (vgpr + 3)//4*4
    return f""".p2align 6
.amdhsa_kernel {name}
  .amdhsa_next_free_vgpr {vgpr}
  .amdhsa_next_free_sgpr {sgpr}
  .amdhsa_accum_offset {accum}
  .amdhsa_group_segment_fixed_size 0
  .amdhsa_kernarg_size 104
  .amdhsa_user_sgpr_count 2
  .amdhsa_user_sgpr_kernarg_segment_ptr 1
  .amdhsa_system_sgpr_workgroup_id_x 1
.end_amdhsa_kernel
"""

def make_srd(A, d, ptr, nbytes, off=0):
    if off:
        A(f"s_add_u32 s{d}, s{ptr}, {off}")
        A(f"s_addc_u32 s{d+1}, s{ptr+1}, 0")
    else:
        A(f"s_mov_b32 s{d}, s{ptr}")
        A(f"s_mov_b32 s{d+1}, s{ptr+1}")
    A(f"s_mov_b32 s{d+2}, {nbytes}")
    A(f"s_mov_b32 s{d+3}, 0x00020000")
```

```python
from asmlib import *
from parta import *

class G: pass

def gemm_core(A, NT, wpitch, sX, sW, sxoff, swoff, swave, lane, sbase, vbase, NSTAGE=3, vtile_swapped=(), KT=16, stamp=None):
    g = G()
    STAGE = 16384 + NT*8192
    g.lds = STAGE*NSTAGE
    s = sbase
    sT0, sT1, sXs, sWs, sM = s, s+1, s+2, s+3, s+4
    v = vbase
    vXo = v
    vWo = v+2
    vt = v+3
    vXa = v+6
    vWa = vXa + 4*NSTAGE
    vfr = (vWa + NSTAGE + 3)//4*4
    FR = (2+NT)*4
    vacc = vfr + 2*FR
    g.acc = [[vacc + (t*2+st)*16 for st in range(2)] for t in range(NT)]
    g.vend = vacc + NT*32
    g.vfree = vfr
    g.vtmp = v
    A(f"v_lshrrev_b32 v{vt}, 3, v{lane}")
    A(f"v_and_b32 v{vt+1}, 7, v{lane}")
    A(f"v_lshrrev_b32 v{vt+2}, 4, v{lane}")
    A(f"v_xor_b32 v{vXo}, v{vt+1}, v{vt+2}")
    A(f"v_xor_b32 v{vXo+1}, 4, v{vXo}")
    for j in range(2):
        A(f"v_lshlrev_b32 v{vXo+j}, 4, v{vXo+j}")
        A(f"v_lshl_add_u32 v{vXo+j}, v{vt}, 11, v{vXo+j}")
    A(f"v_and_b32 v{vt+2}, 2, v{vt}")
    A(f"v_lshlrev_b32 v{vt+2}, 1, v{vt+2}")
    A(f"v_xor_b32 v{vWo}, v{vt+1}, v{vt+2}")
    A(f"v_lshlrev_b32 v{vWo}, 4, v{vWo}")
    A(f"s_mov_b32 s{sT0}, {wpitch}")
    A(f"v_mul_lo_u32 v{vt+2}, v{vt}, s{sT0}")
    A(f"v_add_u32 v{vWo}, v{vWo}, v{vt+2}")
    A(f"s_lshl_b32 s{sT0}, s{swave}, 16")
    A(f"s_add_u32 s{sXs}, s{sxoff}, s{sT0}")
    nW = NT*8//4
    def dma(kt):
        slot = kt % NSTAGE
        for i in range(4):
            A(f"s_lshl_b32 s{sT0}, s{swave}, 12")
            A(f"s_add_u32 m0, s{sT0}, {slot*STAGE + i*1024}")
            A(f"s_add_u32 s{sT1}, s{sXs}, {i*16384 + kt*128}")
            A(f"buffer_load_dwordx4 v{vXo + (i&1)}, s[{sX}:{sX+3}], s{sT1} offen lds")
        for j in range(nW):
            A(f"s_mul_i32 s{sT0}, s{swave}, {nW*1024}")
            A(f"s_add_u32 m0, s{sT0}, {slot*STAGE + 16384 + j*1024}")
            A(f"s_add_u32 s{sT1}, s{sM+j}, {kt*64*wpitch}")
            A(f"buffer_load_dwordx4 v{vWo}, s[{sW}:{sW+3}], s{sT1} offen lds")
    for j in range(nW):
        A(f"s_mul_i32 s{sT0}, s{swave}, {nW}")
        A(f"s_add_u32 s{sT0}, s{sT0}, {j}")
        A(f"s_lshr_b32 s{sT1}, s{sT0}, 3")
        A(f"s_and_b32 s{sT0}, s{sT0}, 7")
        A(f"s_lshl_b32 s{sT1}, s{sT1}, 11")
        A(f"s_mul_i32 s{sT0}, s{sT0}, {8*wpitch}")
        A(f"s_add_u32 s{sM+j}, s{sT0}, s{sT1}")
        A(f"s_add_u32 s{sM+j}, s{sM+j}, s{swoff}")
    g.send = sM + nW
    ND = 4 + nW
    for kt in range(min(NSTAGE, KT)): dma(kt)
    A(f"v_and_b32 v{vt}, 31, v{lane}")
    A(f"v_lshrrev_b32 v{vt+1}, 1, v{vt}")
    A(f"v_and_b32 v{vt+1}, 7, v{vt+1}")
    A(f"v_lshrrev_b32 v{vt+2}, 5, v{lane}")
    A(f"v_xor_b32 v{vt+1}, v{vt+1}, v{vt+2}")
    A(f"s_lshr_b32 s{sT0}, s{swave}, 1")
    A(f"s_lshl_b32 s{sT0}, s{sT0}, 13")
    A(f"v_lshlrev_b32 v{vt}, 7, v{vt}")
    A(f"v_add_u32 v{vt}, s{sT0}, v{vt}")
    for ks in range(4):
        A(f"v_xor_b32 v{vXa+ks}, {2*ks}, v{vt+1}")
        A(f"v_lshl_add_u32 v{vXa+ks}, v{vXa+ks}, 4, v{vt}")
        for sl in range(1, NSTAGE):
            A(f"v_add_u32 v{vXa+4*sl+ks}, {sl*STAGE}, v{vXa+ks}")
    A(f"v_lshrrev_b32 v{vt}, 4, v{lane}")
    A(f"v_and_b32 v{vt+1}, 1, v{vt}")
    A(f"v_lshlrev_b32 v{vt+1}, 1, v{vt+1}")
    A(f"v_bfe_u32 v{vt+2}, v{lane}, 1, 1")
    A(f"v_add_u32 v{vt+1}, v{vt+1}, v{vt+2}")
    A(f"s_and_b32 s{sT0}, s{swave}, 1")
    A(f"s_lshl_b32 s{sT0}, s{sT0}, 2")
    A(f"v_add_u32 v{vt+1}, s{sT0}, v{vt+1}")
    A(f"v_bfe_u32 v{vt+2}, v{lane}, 3, 1")
    A(f"v_lshlrev_b32 v{vt+2}, 2, v{vt+2}")
    A(f"v_xor_b32 v{vt+1}, v{vt+1}, v{vt+2}")
    A(f"v_lshlrev_b32 v{vWa}, 4, v{vt+1}")
    A(f"v_and_b32 v{vt+1}, 1, v{lane}")
    A(f"v_lshl_add_u32 v{vWa}, v{vt+1}, 3, v{vWa}")
    A(f"v_lshrrev_b32 v{vt}, 1, v{vt}")
    A(f"v_lshlrev_b32 v{vt}, 3, v{vt}")
    A(f"v_bfe_u32 v{vt+1}, v{lane}, 2, 2")
    A(f"v_add_u32 v{vt}, v{vt}, v{vt+1}")
    A(f"v_lshl_add_u32 v{vWa}, v{vt}, 7, v{vWa}")
    for sl in range(1, NSTAGE):
        A(f"v_add_u32 v{vWa+sl}, {sl*STAGE}, v{vWa}")
    for j in range(NT*32): A(f"v_mov_b32 v{vacc+j}, 0")
    def fx(set_, st): return vfr + set_*FR + st*4
    def fw(set_, t): return vfr + set_*FR + 8 + t*4
    def reads(kt, ks):
        slot = kt % NSTAGE; set_ = (kt*4+ks) % 2
        for st in range(2):
            A(f"ds_read_b128 v[{fx(set_,st)}:{fx(set_,st)+3}], v{vXa+4*slot+ks} offset:{st*4096}")
        for t in range(NT):
            for jh in range(2):
                A(f"ds_read_b64_tr_b16 v[{fw(set_,t)+2*jh}:{fw(set_,t)+2*jh+1}], v{vWa+slot} offset:{16384 + t*8192 + (16*ks+4*jh)*128}")
    def mfmas(kt, ks):
        set_ = (kt*4+ks) % 2
        for t in range(NT):
            for st in range(2):
                a = g.acc[t][st]
                x = f"v[{fx(set_,st)}:{fx(set_,st)+3}]"; w = f"v[{fw(set_,t)}:{fw(set_,t)+3}]"
                if t in vtile_swapped: A(f"v_mfma_f32_32x32x16_bf16 v[{a}:{a+15}], {x}, {w}, v[{a}:{a+15}]")
                else:                  A(f"v_mfma_f32_32x32x16_bf16 v[{a}:{a+15}], {w}, {x}, v[{a}:{a+15}]")
    g.extra_vm = getattr(g, "extra_vm", 0)
    A(f"s_waitcnt vmcnt({ND*(min(NSTAGE,KT)-1)})")
    A("s_barrier")
    if stamp: stamp()
    reads(0, 0)
    for kt in range(KT):
        for ks in range(4):
            A("s_waitcnt lgkmcnt(0)")
            if ks < 3:
                reads(kt, ks+1)
            elif kt+1 < KT:
                inflight = min(kt+NSTAGE-1, KT-1) - (kt+1)
                A(f"s_waitcnt vmcnt({ND*inflight})")
                A("s_barrier")
                reads(kt+1, 0)
                if kt+NSTAGE < KT: dma(kt+NSTAGE)
            mfmas(kt, ks)
    if stamp: stamp()
    return g
```

```python
from asmlib import *

WS_KVT = 0
WS_Y2T = 4 << 20
WS_Q   = 8 << 20
WS_O   = 12 << 20
WS_ST  = 16 << 20
MB4 = 4 << 20

def unpack(A, dst, src, half):
    if half == 0: A(f"v_lshlrev_b32 v{dst}, 16, v{src}")
    else:         A(f"v_and_b32 v{dst}, 0xffff0000, v{src}")

def round2(A, a, b, tmp):
    A(f"v_cvt_pk_bf16_f32 v{tmp}, v{a}, v{b}")
    A(f"v_lshlrev_b32 v{a}, 16, v{tmp}")
    A(f"v_and_b32 v{b}, 0xffff0000, v{tmp}")

def apre_job(A, sjob, sbase, vbase, R=8, lane=None):
    sK, sV, sW, sO = sbase, sbase+4, sbase+8, sbase+12
    sP = sbase+16
    st = sbase+24
    A(f"s_load_dwordx2 s[{sP}:{sP+1}], s[0:1], 8")
    A(f"s_load_dwordx2 s[{sP+2}:{sP+3}], s[0:1], 16")
    A(f"s_load_dwordx2 s[{sP+4}:{sP+5}], s[0:1], 24")
    A(f"s_load_dwordx2 s[{sP+6}:{sP+7}], s[0:1], 96")
    A(f"s_lshr_b32 s{st}, s{sjob}, 4")
    A(f"s_and_b32 s{st+1}, s{sjob}, 15")
    A(f"s_mul_i32 s{st}, s{st}, {8*R}")
    A(f"s_lshl_b32 s{st+1}, s{st+1}, 6")
    v = vbase
    vcg, vr0, vch = v, v+1, v+2
    vaddr = v+3
    vW = vaddr + R+3; vW = (vW+3)//4*4
    vK = vW+16
    vV = vK + (R+3)*4
    vw = vV + R*4
    vk = vw+4
    vv = vk + R+3
    vt = vv + R
    vo = (vt+5+3)//4*4
    vend = vo + R//2
    A(f"v_and_b32 v{vcg}, 7, v{lane}")
    A(f"v_lshrrev_b32 v{vr0}, 3, v{lane}")
    A(f"v_mul_u32_u24 v{vr0}, {R}, v{vr0}")
    A(f"v_add_u32 v{vr0}, s{st}, v{vr0}")
    A(f"v_lshlrev_b32 v{vch}, 3, v{vcg}")
    A(f"v_add_u32 v{vch}, s{st+1}, v{vch}")
    A("s_waitcnt lgkmcnt(0)")
    make_srd(A, sK, sP, MB4); make_srd(A, sV, sP+2, MB4); make_srd(A, sW, sP+4, 8192); make_srd(A, sO, sP+6, MB4, WS_KVT)
    A(f"v_lshlrev_b32 v{vaddr}, 11, v{vr0}")
    A(f"v_lshl_add_u32 v{vaddr}, v{vch}, 1, v{vaddr}")
    A(f"v_add_u32 v{vaddr}, {(-3*2048) & 0xffffffff}, v{vaddr}")
    for i in range(1, R+3):
        A(f"v_add_u32 v{vaddr+i}, {i*2048}, v{vaddr}")
    A(f"v_lshlrev_b32 v{vt}, 3, v{vch}")
    for j in range(4):
        A(f"buffer_load_dwordx4 v[{vW+4*j}:{vW+4*j+3}], v{vt}, s[{sW}:{sW+3}], 0 offen offset:{16*j}")
    for i in range(R+3):
        A(f"buffer_load_dwordx4 v[{vK+4*i}:{vK+4*i+3}], v{vaddr+i}, s[{sK}:{sK+3}], 0 offen")
    for i in range(R):
        A(f"buffer_load_dwordx4 v[{vV+4*i}:{vV+4*i+3}], v{vaddr+i+3}, s[{sV}:{sV+3}], 0 offen")
    vob = vaddr
    A(f"v_sub_u32 v{vt}, {2048-R}, v{vr0}")
    A(f"v_lshlrev_b32 v{vt}, 1, v{vt}")
    A(f"v_lshl_add_u32 v{vob}, v{vch}, 12, v{vt}")
    A("s_waitcnt vmcnt(0)")
    a0, a1, p0, p1, tmp = vt, vt+1, vt+2, vt+3, vt+4
    for c in range(8):
        for j in range(4):
            unpack(A, vw+j, vW+2*c+j//2, j%2)
        for i in range(R+3):
            unpack(A, vk+i, vK+4*i+c//2, c%2)
        for i in range(R):
            unpack(A, vv+i, vV+4*i+c//2, c%2)
        for m in range(R//2):
            s = 2*m
            A(f"v_mul_f32 v{a0}, v{vk+s}, v{vw+3}")
            A(f"v_mul_f32 v{a1}, v{vk+s+1}, v{vw+3}")
            round2(A, a0, a1, tmp)
            for t in range(1, 4):
                A(f"v_mul_f32 v{p0}, v{vk+s+t}, v{vw+3-t}")
                A(f"v_mul_f32 v{p1}, v{vk+s+1+t}, v{vw+3-t}")
                round2(A, p0, p1, tmp)
                A(f"v_add_f32 v{a0}, v{a0}, v{p0}")
                A(f"v_add_f32 v{a1}, v{a1}, v{p1}")
                round2(A, a0, a1, tmp)
            A(f"v_mul_f32 v{a0}, v{a0}, v{vv+s}")
            A(f"v_mul_f32 v{a1}, v{a1}, v{vv+s+1}")
            A(f"v_cvt_pk_bf16_f32 v{vo + R//2-1-m}, v{a1}, v{a0}")
        if R == 8:
            A(f"buffer_store_dwordx4 v[{vo}:{vo+3}], v{vob}, s[{sO}:{sO+3}], 0 offen")
        else:
            A(f"buffer_store_dwordx2 v[{vo}:{vo+1}], v{vob}, s[{sO}:{sO+3}], 0 offen")
        if c < 7:
            A(f"v_add_u32 v{vob}, 4096, v{vob}")
            A("s_nop 1")
    return vend

CSTR = 4160
U_OFF = 4*CSTR
CONV_LDS = U_OFF + 4608

def conv_job(A, sch, sldsbase, sbase, vbase, lane, stamp=None, barrier_after=None, mod=''):
    sH, sU, sD, sY = sbase, sbase+4, sbase+8, sbase+12
    sP = sbase+16; st = sbase+24
    A(f"s_load_dwordx2 s[{sP}:{sP+1}], s[0:1], 32")
    A(f"s_load_dwordx2 s[{sP+2}:{sP+3}], s[0:1], 40")
    A(f"s_load_dwordx2 s[{sP+6}:{sP+7}], s[0:1], 96")
    if stamp: stamp(0)
    v = vbase
    vb, vg, vA, vB, vt, vD, vE, vO = v, v+1, v+2, v+3, v+4, v+5, v+6, v+7
    vz = v+8
    vacc = v+12
    vfr = vacc+32
    vend = vfr + 128
    A(f"v_and_b32 v{vb}, 15, v{lane}")
    A(f"v_lshrrev_b32 v{vg}, 4, v{lane}")
    A(f"v_lshlrev_b32 v{vt}, 4, v{lane}")
    A(f"s_lshl_b32 s{st}, s{sch}, 12")
    A("s_waitcnt lgkmcnt(0)")
    make_srd(A, sH, sP, MB4); make_srd(A, sD, sP+2, 2048); make_srd(A, sU, sP+6, MB4, WS_KVT); make_srd(A, sY, sP+6, MB4, WS_Y2T)
    hd = vfr + 64
    for i in range(4):
        A(f"s_add_u32 s{st+1}, s{st}, {1024*i}")
        A(f"buffer_load_dwordx4 v[{hd+8*i}:{hd+8*i+3}], v{vt}, s[{sH}:{sH+3}], s{st+1} offen")
        A(f"buffer_load_dwordx2 v[{hd+8*i+4}:{hd+8*i+5}], v{vt}, s[{sH}:{sH+3}], s{st+1} offen offset:16")
    for i in range(4):
        A(f"s_add_u32 m0, s{sldsbase}, {U_OFF+1024*i}")
        A(f"s_add_u32 s{st+1}, s{st}, {1024*i}")
        A(f"buffer_load_dwordx4 v{vt}, s[{sU}:{sU+3}], s{st+1} offen lds")
    A(f"v_mov_b32 v{vD}, s{sch}")
    A(f"v_lshlrev_b32 v{vD}, 1, v{vD}")
    A(f"buffer_load_ushort v{vD}, v{vD}, s[{sD}:{sD+3}], 0 offen")
    for j in range(4): A(f"v_mov_b32 v{vz+j}, 0")
    A(f"v_add_u32 v{vE}, s{sldsbase}, v{vt}")
    A(f"v_cmp_gt_u32 vcc, 32, v{lane}")
    A(f"s_and_saveexec_b64 s[{st+2}:{st+3}], vcc")
    A(f"ds_write_b128 v{vE}, v[{vz}:{vz+3}] offset:{U_OFF+4096}")
    A(f"v_cmp_gt_u32 vcc, 1, v{lane}")
    A(f"s_and_b64 exec, exec, vcc")
    for sg in range(4):
        A(f"ds_write_b128 v{vE}, v[{vz}:{vz+3}] offset:{sg*CSTR}")
        A(f"ds_write_b64 v{vE}, v[{vz}:{vz+1}] offset:{sg*CSTR+16}")
    A(f"s_waitcnt vmcnt(12)")
    h01, h23 = hd, hd+1
    t0, t1 = vfr+2, vfr+3
    A(f"ds_write_b64 v{vE}, v[{vz}:{vz+1}] offset:24")
    A(f"v_mov_b32 v{t0}, 0")
    A(f"v_lshlrev_b32 v{t1}, 16, v{h01}")
    A(f"ds_write_b64 v{vE}, v[{t0}:{t1}] offset:{CSTR+24}")
    A(f"v_mov_b32 v{t1}, v{h01}")
    A(f"ds_write_b64 v{vE}, v[{t0}:{t1}] offset:{2*CSTR+24}")
    A(f"v_lshlrev_b32 v{t0}, 16, v{h01}")
    A(f"v_alignbyte_b32 v{t1}, v{h23}, v{h01}, 2")
    A(f"ds_write_b64 v{vE}, v[{t0}:{t1}] offset:{3*CSTR+24}")
    A(f"s_mov_b64 exec, s[{st+2}:{st+3}]")
    for i in range(4):
        d = hd + 8*i
        A(f"s_waitcnt vmcnt({11-2*i})")
        A(f"ds_write_b128 v{vE}, v[{d}:{d+3}] offset:{32+1024*i}")
        w1, w2, w3 = vfr+12*(i%2)*1+4, vfr+12*(i%2)+8, vfr+12*(i%2)+12
        w1, w2, w3 = vfr+16*i+4, vfr+16*i+8, vfr+16*i+12
        for j in range(4): A(f"v_alignbyte_b32 v{w1+j}, v{d+j+1}, v{d+j}, 2")
        A(f"ds_write_b128 v{vE}, v[{w1}:{w1+3}] offset:{CSTR+32+1024*i}")
        for j in range(4): A(f"v_mov_b32 v{w2+j}, v{d+j+1}")
        A(f"ds_write_b128 v{vE}, v[{w2}:{w2+3}] offset:{2*CSTR+32+1024*i}")
        for j in range(4): A(f"v_alignbyte_b32 v{w3+j}, v{d+j+2}, v{d+j+1}, 2")
        A(f"ds_write_b128 v{vE}, v[{w3}:{w3+3}] offset:{3*CSTR+32+1024*i}")
    A(f"v_add_u32 v{vE}, 1, v{vb}")
    A(f"v_and_b32 v{vA}, 3, v{vE}")
    A(f"v_mul_u32_u24 v{vA}, {CSTR}, v{vA}")
    A(f"v_lshrrev_b32 v{vE}, 2, v{vE}")
    A(f"v_lshl_add_u32 v{vA}, v{vE}, 3, v{vA}")
    A(f"v_lshl_add_u32 v{vA}, v{vg}, 4, v{vA}")
    A(f"v_add_u32 v{vA}, s{sldsbase}, v{vA}")
    A(f"v_lshlrev_b32 v{vB}, 5, v{vb}")
    A(f"v_lshlrev_b32 v{vE}, 4, v{vg}")
    A(f"v_sub_u32 v{vB}, v{vE}, v{vB}")
    A(f"v_add_u32 v{vB}, s{sldsbase}, v{vB}")
    A(f"v_add_u32 v{vB}, {U_OFF+4064-3584}, v{vB}")
    for j in range(32): A(f"v_mov_b32 v{vacc+j}, 0")
    A("s_waitcnt vmcnt(0) lgkmcnt(0)")
    if stamp: stamp(1)
    def fa(s, m): return vfr + s*64 + m*4
    def fb(s, q): return vfr + s*64 + 32 + q*4
    def loads(r, m):
        s = r % 2
        A(f"ds_read_b64 v[{fa(s,m)}:{fa(s,m)+1}], v{vA} offset:{512*m+64*r}")
        A(f"ds_read_b64 v[{fa(s,m)+2}:{fa(s,m)+3}], v{vA} offset:{512*m+64*r+8}")
        A(f"ds_read_b128 v[{fb(s,m)}:{fb(s,m)+3}], v{vB} offset:{512*(7-m)+64*r}")
    for m in range(8): loads(0, m)
    A("s_waitcnt lgkmcnt(0)")
    for r in range(8):
        s = r % 2
        cnt = 0
        for t in range(8):
            for m in range(t+1):
                A(f"v_mfma_f32_16x16x32_bf16 v[{vacc+4*t}:{vacc+4*t+3}], v[{fa(s,m)}:{fa(s,m)+3}], v[{fb(s,t-m)}:{fb(s,t-m)+3}], v[{vacc+4*t}:{vacc+4*t+3}]")
                cnt += 1
                if r < 7 and cnt % 3 == 0 and cnt//3 <= 8:
                    loads(r+1, cnt//3-1)
        if r < 7: A("s_waitcnt lgkmcnt(0)")
        if barrier_after == r: A("s_barrier")
    if stamp: stamp(2)
    A(f"v_lshlrev_b32 v{vE}, 5, v{vb}")
    A(f"v_lshl_add_u32 v{vE}, v{vg}, 3, v{vE}")
    A(f"v_sub_u32 v{vE}, s{sldsbase}, v{vE}")
    A(f"v_add_u32 v{vE}, {U_OFF+4088-3584}, v{vE}")
    for t in range(8):
        A(f"ds_read_b64 v[{vfr+2*t}:{vfr+2*t+1}], v{vE} offset:{512*(7-t)}")
    A(f"v_lshlrev_b32 v{vO}, 5, v{vb}")
    A(f"v_lshl_add_u32 v{vO}, v{vg}, 3, v{vO}")
    A(f"v_add_u32 v{vO}, s{st}, v{vO}")
    A(f"v_lshlrev_b32 v{vD}, 16, v{vD}")
    A("s_waitcnt lgkmcnt(0)")
    A("s_nop 7")
    w = vfr + 16
    for t in range(8):
        y = vacc + 4*t
        ua, ub = vfr+2*t, vfr+2*t+1
        u0, u1, u2, u3, tmp = w, w+1, w+2, w+3, w+4
        unpack(A, u0, ub, 1); unpack(A, u1, ub, 0); unpack(A, u2, ua, 1); unpack(A, u3, ua, 0)
        for j in range(4): A(f"v_mul_f32 v{u0+j}, v{u0+j}, v{vD}")
        round2(A, u0, u1, tmp); round2(A, u2, u3, tmp)
        round2(A, y, y+1, tmp); round2(A, y+2, y+3, tmp)
        for j in range(4): A(f"v_add_f32 v{u0+j}, v{u0+j}, v{y+j}")
        o = w + 6 + 2*t
        A(f"v_cvt_pk_bf16_f32 v{o}, v{u0}, v{u1}")
        A(f"v_cvt_pk_bf16_f32 v{o+1}, v{u2}, v{u3}")
        A(f"buffer_store_dwordx2 v[{o}:{o+1}], v{vO}, s[{sY}:{sY+3}], 0 offen offset:{512*t}{mod}")
    if stamp: stamp(3)
    return vend

def apost_job(A, sjob, sbase, vbase, lane):
    sQ, sY, sO = sbase, sbase+4, sbase+8
    sP = sbase+16; st = sbase+24
    A(f"s_load_dwordx2 s[{sP}:{sP+1}], s[0:1], 0")
    A(f"s_load_dwordx2 s[{sP+2}:{sP+3}], s[0:1], 80")
    A(f"s_load_dwordx2 s[{sP+6}:{sP+7}], s[0:1], 96")
    A(f"s_lshr_b32 s{st}, s{sjob}, 4")
    A(f"s_and_b32 s{st+1}, s{sjob}, 15")
    A(f"s_lshl_b32 s{st}, s{st}, 6")
    A(f"s_lshl_b32 s{st+1}, s{st+1}, 6")
    v = vbase
    vr0, vch, vqa, vya, voa, vt = v, v+1, v+2, v+3, v+4, v+5
    vQ = (v+8+3)//4*4
    vY = vQ+32
    vo = vY+32
    vend = vo+8
    A(f"v_and_b32 v{vch}, 7, v{lane}")
    A(f"v_lshlrev_b32 v{vch}, 3, v{vch}")
    A(f"v_add_u32 v{vch}, s{st+1}, v{vch}")
    A(f"v_lshrrev_b32 v{vr0}, 3, v{lane}")
    A(f"v_lshlrev_b32 v{vr0}, 3, v{vr0}")
    A(f"v_add_u32 v{vr0}, s{st}, v{vr0}")
    A(f"v_lshlrev_b32 v{vqa}, 11, v{vr0}")
    A(f"v_lshl_add_u32 v{vqa}, v{vch}, 1, v{vqa}")
    A(f"v_lshlrev_b32 v{voa}, 12, v{vr0}")
    A(f"v_lshl_add_u32 v{voa}, v{vch}, 1, v{voa}")
    A(f"v_lshlrev_b32 v{vya}, 12, v{vch}")
    A(f"v_lshl_add_u32 v{vya}, v{vr0}, 1, v{vya}")
    A("s_waitcnt lgkmcnt(0)")
    make_srd(A, sQ, sP, MB4); make_srd(A, sO, sP+2, 2*MB4); make_srd(A, sY, sP+6, MB4, WS_Y2T)
    for i in range(8):
        A(f"s_mov_b32 s{st+2}, {2048*i}")
        A(f"buffer_load_dwordx4 v[{vQ+4*i}:{vQ+4*i+3}], v{vqa}, s[{sQ}:{sQ+3}], s{st+2} offen")
        A(f"s_mov_b32 s{st+3}, {4096*i}")
        A(f"buffer_load_dwordx4 v[{vY+4*i}:{vY+4*i+3}], v{vya}, s[{sY}:{sY+3}], s{st+3} offen")
    A("s_waitcnt vmcnt(0)")
    q0, q1, y0, y1 = vt, vt+1, vt+2, v+8-8+0
    for i in range(8):
        o = vo + 4*(i%2)
        for j in range(4):
            unpack(A, vt, vQ+4*i+j, 0); unpack(A, vt+1, vQ+4*i+j, 1)
            unpack(A, vt+2, vY+4*(2*j)+i//2, i%2)
            A(f"v_mul_f32 v{vt}, v{vt}, v{vt+2}")
            unpack(A, vt+2, vY+4*(2*j+1)+i//2, i%2)
            A(f"v_mul_f32 v{vt+1}, v{vt+1}, v{vt+2}")
            A(f"v_cvt_pk_bf16_f32 v{o+j}, v{vt}, v{vt+1}")
        A(f"s_mov_b32 s{st+2}, {4096*i}")
        A(f"buffer_store_dwordx4 v[{o}:{o+3}], v{voa}, s[{sO}:{sO+3}], s{st+2} offen")
    return vend
```

```python
from asmlib import *
from parta import *
from gemm import *

ST_SZ = 8448
NPART = 32
LOG2E = 0x3fb8aa3b

def xhalf(A, op, a, t0, t1):
    A(f"v_mov_b32 v{t0}, v{a}")
    A(f"v_mov_b32 v{t1}, v{a}")
    A("s_nop 1")
    A(f"v_permlane32_swap_b32 v{t0}, v{t1}")
    A("s_nop 1")
    A(f"{op} v{a}, v{t0}, v{t1}")

def featmap(A, b0, b1, w0, w1, P, EP, t, out, sc):
    A(f"v_mfma_f32_32x32x16_bf16 v[{P}:{P+15}], v[{w0}:{w0+3}], v[{b0}:{b0+3}], 0")
    A(f"v_mfma_f32_32x32x16_bf16 v[{P}:{P+15}], v[{w1}:{w1+3}], v[{b1}:{b1+3}], v[{P}:{P+15}]")
    A("s_nop 7"); A("s_nop 4")
    for i in range(8): round2(A, P+2*i, P+2*i+1, t)
    mx, mn, sp, sm = t+1, t+2, t+3, t+4
    A(f"v_max3_f32 v{mx}, v{P}, v{P+1}, v{P+2}")
    A(f"v_min3_f32 v{mn}, v{P}, v{P+1}, v{P+2}")
    for i in range(3, 15, 2):
        A(f"v_max3_f32 v{mx}, v{mx}, v{P+i}, v{P+i+1}")
        A(f"v_min3_f32 v{mn}, v{mn}, v{P+i}, v{P+i+1}")
    A(f"v_max_f32 v{mx}, v{mx}, v{P+15}")
    A(f"v_min_f32 v{mn}, v{mn}, v{P+15}")
    xhalf(A, "v_max_f32", mx, t+5, t+6)
    xhalf(A, "v_min_f32", mn, t+5, t+6)
    for i in range(16):
        A(f"v_sub_f32 v{EP+i}, v{P+i}, v{mx}")
        A(f"v_sub_f32 v{P+i}, v{mn}, v{P+i}")
        A(f"v_mul_f32 v{EP+i}, s{sc}, v{EP+i}")
        A(f"v_mul_f32 v{P+i}, s{sc}, v{P+i}")
        A(f"v_exp_f32 v{EP+i}, v{EP+i}")
        A(f"v_exp_f32 v{P+i}, v{P+i}")
    A("s_nop 0")
    A(f"v_add_f32 v{sp}, v{EP}, v{EP+1}")
    A(f"v_add_f32 v{sm}, v{P}, v{P+1}")
    for i in range(2, 16):
        A(f"v_add_f32 v{sp}, v{sp}, v{EP+i}")
        A(f"v_add_f32 v{sm}, v{sm}, v{P+i}")
    xhalf(A, "v_add_f32", sp, t+5, t+6)
    xhalf(A, "v_add_f32", sm, t+5, t+6)
    A(f"v_rcp_f32 v{sp}, v{sp}")
    A(f"v_rcp_f32 v{sm}, v{sm}")
    A("s_nop 0")
    for i in range(16):
        A(f"v_mul_f32 v{EP+i}, v{EP+i}, v{sp}")
        A(f"v_mul_f32 v{P+i}, v{P+i}, v{sm}")
    for i in range(8):
        A(f"v_cvt_pk_bf16_f32 v{out+i}, v{EP+2*i}, v{EP+2*i+1}")
        A(f"v_cvt_pk_bf16_f32 v{out+8+i}, v{P+2*i}, v{P+2*i+1}")

def wg_map(A, srb, scol, t0):
    A(f"s_and_b32 s{t0}, s2, 1")
    A(f"s_lshl_b32 s{srb}, s{t0}, 3")
    A(f"s_bfe_u32 s{t0}, s2, 0x30003")
    A(f"s_add_u32 s{srb}, s{srb}, s{t0}")
    A(f"s_bfe_u32 s{t0}, s2, 0x20001")
    A(f"s_lshl_b32 s{scol}, s{t0}, 2")
    A(f"s_bfe_u32 s{t0}, s2, 0x20006")
    A(f"s_add_u32 s{scol}, s{scol}, s{t0}")

def wphi_addr(A, dst, lane, t, natural):
    A(f"v_lshrrev_b32 v{t}, 5, v{lane}")
    A(f"v_lshlrev_b32 v{t}, {3 if natural else 2}, v{t}")
    A(f"v_bfe_u32 v{dst}, v{lane}, 2, 2")
    A(f"v_add_u32 v{t}, v{t}, v{dst}")
    A(f"v_lshlrev_b32 v{t}, 6, v{t}")
    A(f"v_bfe_u32 v{dst}, v{lane}, 4, 1")
    A(f"v_lshl_add_u32 v{t}, v{dst}, 5, v{t}")
    A(f"v_and_b32 v{dst}, 3, v{lane}")
    A(f"v_lshl_add_u32 v{dst}, v{dst}, 3, v{t}")

def wphi_reads(A, w, addr, off, natural):
    for k in range(2):
        for jh in range(2):
            row = 16*k + (4*jh if natural else 8*jh)
            A(f"ds_read_b64_tr_b16 v[{w+4*k+2*jh}:{w+4*k+2*jh+1}], v{addr} offset:{off + row*64}")

def k1_gemm(A, swave, lane, sbase, vbase):
    s = sbase
    sX, sW, sPH, sQ, sS = s, s+4, s+8, s+12, s+16
    sP = s+20
    srb, shp, sxo, swo, st0, shead, sc = s+28, s+29, s+30, s+31, s+32, s+33, s+34
    A(f"s_load_dwordx2 s[{sP}:{sP+1}], s[0:1], 48")
    A(f"s_load_dwordx2 s[{sP+2}:{sP+3}], s[0:1], 56")
    A(f"s_load_dwordx2 s[{sP+4}:{sP+5}], s[0:1], 64")
    A(f"s_load_dwordx2 s[{sP+6}:{sP+7}], s[0:1], 96")
    wg_map(A, srb, shp, st0)
    A(f"s_lshl_b32 s{sxo}, s{srb}, 18")
    A(f"s_lshl_b32 s{swo}, s{shp}, 7")
    A(f"s_and_b32 s{st0}, s{swave}, 1")
    A(f"s_lshl_b32 s{shead}, s{shp}, 1")
    A(f"s_add_u32 s{shead}, s{shead}, s{st0}")
    A(f"s_mov_b32 s{sc}, {LOG2E}")
    A("s_waitcnt lgkmcnt(0)")
    make_srd(A, sX, sP, MB4); make_srd(A, sW, sP+2, 6<<20); make_srd(A, sPH, sP+4, 65536)
    make_srd(A, sQ, sP+6, MB4, WS_Q); make_srd(A, sS, sP+6, 32*NPART*ST_SZ, WS_ST)
    PH_OFF = 3*(16384+3*8192)
    vt = vbase
    A(f"v_lshlrev_b32 v{vt}, 4, v{lane}")
    for i in range(2):
        A(f"s_lshl_b32 s{st0}, s{swave}, 11")
        A(f"s_add_u32 m0, s{st0}, {PH_OFF + i*1024}")
        A(f"s_lshl_b32 s{st0}, s{shead}, 11")
        A(f"s_add_u32 s{st0}, s{st0}, {i*1024}")
        A(f"buffer_load_dwordx4 v{vt}, s[{sPH}:{sPH+3}], s{st0} offen lds")
    g = gemm_core(A, 3, 6144, sX, sW, sxo, swo, swave, lane, s+36, vbase, 3, vtile_swapped=(2,))
    e = (g.vend+3)//4*4
    P, EP, PHI, TD = e, e+16, e+32, e+48
    KVA = e+64
    f = g.vfree
    ID = f
    WF = f+8
    t = f+16
    ZS = f+24
    va = f+26
    vend = e+96
    Q, K, V = g.acc
    hi = va+1
    A(f"v_lshrrev_b32 v{hi}, 5, v{lane}")
    wphi_addr(A, va, lane, t, False)
    A(f"s_lshl_b32 s{st0}, s{swave}, 11")
    A(f"s_add_u32 s{st0}, s{st0}, {PH_OFF}")
    A(f"v_add_u32 v{va}, s{st0}, v{va}")
    wphi_reads(A, WF, va, 0, False)
    A(f"v_and_b32 v{t}, 31, v{lane}")
    A(f"v_lshlrev_b32 v{t+1}, 2, v{hi}")
    A(f"v_sub_u32 v{t}, v{t}, v{t+1}")
    A(f"v_mov_b32 v{t+2}, 0x3f80")
    A(f"v_mov_b32 v{t+3}, 0x3f800000")
    for k in range(2):
        for i in range(4):
            j = 2*i
            f0 = 16*k + 8*(j//4) + j%4
            A(f"v_cmp_eq_u32 vcc, {f0}, v{t}")
            A("s_nop 1")
            A(f"v_cndmask_b32 v{ID+4*k+i}, 0, v{t+2}, vcc")
            A(f"v_cmp_eq_u32 vcc, {f0+1}, v{t}")
            A("s_nop 1")
            A(f"v_cndmask_b32 v{t+1}, 0, v{t+3}, vcc")
            A(f"v_or_b32 v{ID+4*k+i}, v{ID+4*k+i}, v{t+1}")
    A(f"s_lshr_b32 s{st0}, s{swave}, 1")
    A(f"s_lshl_b32 s{st0}, s{st0}, 17")
    A(f"s_add_u32 s{st0}, s{st0}, s{sxo}")
    A(f"v_and_b32 v{va+2}, 31, v{lane}")
    A(f"v_lshlrev_b32 v{va+2}, 11, v{va+2}")
    A(f"v_lshl_add_u32 v{va+2}, v{hi}, 3, v{va+2}")
    A(f"v_add_u32 v{va+2}, s{st0}, v{va+2}")
    A(f"s_lshl_b32 s{st0}, s{shead}, 6")
    A(f"v_add_u32 v{va+2}, s{st0}, v{va+2}")
    A(f"v_add_u32 v{va+3}, 0x10000, v{va+2}")
    for st in range(2):
        for gq in range(4):
            A(f"v_cvt_pk_bf16_f32 v{P+8*st+2*gq}, v{Q[st]+4*gq}, v{Q[st]+4*gq+1}")
            A(f"v_cvt_pk_bf16_f32 v{P+8*st+2*gq+1}, v{Q[st]+4*gq+2}, v{Q[st]+4*gq+3}")
            A(f"buffer_store_dwordx2 v[{P+8*st+2*gq}:{P+8*st+2*gq+1}], v{va+2+st}, s[{sQ}:{sQ+3}], 0 offen offset:{16*gq}")
    for st in range(2):
        for i in range(8):
            A(f"v_cvt_pk_bf16_f32 v{K[st]+i}, v{K[st]+2*i}, v{K[st]+2*i+1}")
            A(f"v_cvt_pk_bf16_f32 v{V[st]+i}, v{V[st]+2*i}, v{V[st]+2*i+1}")
    A(f"v_mov_b32 v{ZS}, 0"); A(f"v_mov_b32 v{ZS+1}, 0")
    A("s_waitcnt lgkmcnt(0)")
    for st in range(2):
        featmap(A, K[st], K[st]+4, WF, WF+4, P, EP, t, PHI, sc)
        for sg in range(2):
            A("s_nop 1")
            A(f"v_mfma_f32_32x32x16_bf16 v[{TD}:{TD+15}], v[{PHI+8*sg}:{PHI+8*sg+3}], v[{ID}:{ID+3}], 0")
            A(f"v_mfma_f32_32x32x16_bf16 v[{TD}:{TD+15}], v[{PHI+8*sg+4}:{PHI+8*sg+7}], v[{ID+4}:{ID+7}], v[{TD}:{TD+15}]")
            A("s_nop 7"); A("s_nop 4")
            for i in range(16): A(f"v_add_f32 v{ZS+sg}, v{ZS+sg}, v{TD+i}")
            for i in range(8): A(f"v_cvt_pk_bf16_f32 v{EP+i}, v{TD+2*i}, v{TD+2*i+1}")
            A("s_nop 1")
            c0 = "0" if st == 0 else f"v[{KVA+16*sg}:{KVA+16*sg+15}]"
            A(f"v_mfma_f32_32x32x16_bf16 v[{KVA+16*sg}:{KVA+16*sg+15}], v[{EP}:{EP+3}], v[{V[st]}:{V[st]+3}], {c0}")
            A(f"v_mfma_f32_32x32x16_bf16 v[{KVA+16*sg}:{KVA+16*sg+15}], v[{EP+4}:{EP+7}], v[{V[st]+4}:{V[st]+7}], v[{KVA+16*sg}:{KVA+16*sg+15}]")
            A("s_nop 7")
    xhalf(A, "v_add_f32", ZS, t, t+1)
    xhalf(A, "v_add_f32", ZS+1, t, t+1)
    A(f"s_lshl_b32 s{st0}, s{shead}, 5")
    A(f"s_lshl_b32 s{sc}, s{srb}, 1")
    A(f"s_add_u32 s{st0}, s{st0}, s{sc}")
    A(f"s_lshr_b32 s{sc}, s{swave}, 1")
    A(f"s_add_u32 s{st0}, s{st0}, s{sc}")
    A(f"s_mul_i32 s{st0}, s{st0}, {ST_SZ}")
    A(f"v_and_b32 v{va+2}, 31, v{lane}")
    A(f"v_lshlrev_b32 v{va+3}, 2, v{va+2}")
    A(f"v_lshlrev_b32 v{va+2}, 8, v{va+2}")
    A(f"v_lshl_add_u32 v{va+2}, v{hi}, 4, v{va+2}")
    A("s_nop 4")
    for sg in range(2):
        for gq in range(4):
            A(f"buffer_store_dwordx4 v[{KVA+16*sg+4*gq}:{KVA+16*sg+4*gq+3}], v{va+2}, s[{sS}:{sS+3}], s{st0} offen offset:{(32*sg+8*gq)*4}")
    A(f"v_cmp_gt_u32 vcc, 32, v{lane}")
    A("s_nop 1")
    A(f"v_cndmask_b32 v{ZS}, v{ZS+1}, v{ZS}, vcc")
    A(f"v_lshlrev_b32 v{va+3}, 2, v{lane}")
    A(f"s_add_u32 s{st0}, s{st0}, 8192")
    A(f"buffer_store_dword v{ZS}, v{va+3}, s[{sS}:{sS+3}], s{st0} offen")
    return vend, PH_OFF + 4*2048

def k2_o(A, swg, swave, lane, sbase, vbase):
    s = sbase
    sPH, sQ, sS, sO = s, s+4, s+8, s+12
    sP = s+16
    shead, srb, st0, sc, st1 = s+24, s+25, s+26, s+27, s+28
    A(f"s_load_dwordx2 s[{sP+4}:{sP+5}], s[0:1], 64")
    A(f"s_load_dwordx2 s[{sP+6}:{sP+7}], s[0:1], 96")
    A(f"s_lshr_b32 s{shead}, s{swg}, 3")
    A(f"s_and_b32 s{srb}, s{swg}, 7")
    A(f"s_mov_b32 s{sc}, {LOG2E}")
    A("s_waitcnt lgkmcnt(0)")
    make_srd(A, sPH, sP+4, 65536)
    make_srd(A, sQ, sP+6, MB4, WS_Q); make_srd(A, sS, sP+6, 32*NPART*ST_SZ, WS_ST); make_srd(A, sO, sP+6, MB4, WS_O)
    v = vbase
    va = v
    hi = v+6
    t = v+8
    QF = v+16
    WF = QF+16
    KF = WF+8
    ZF = KF+16
    P = ZF+16; EP = P+16; PHI = EP+16
    NUM = PHI+16; DEN = NUM+16
    LD = DEN+16
    AC = LD+64
    vend = AC+16
    A(f"v_lshrrev_b32 v{hi}, 5, v{lane}")
    A(f"v_lshlrev_b32 v{va}, 4, v{lane}")
    l1 = A.newlabel()
    A(f"s_cmp_ge_u32 s{swave}, 2")
    A(f"s_cbranch_scc1 {l1}")
    A(f"s_lshl_b32 m0, s{swave}, 10")
    A(f"s_lshl_b32 s{st0}, s{shead}, 11")
    A(f"s_lshl_b32 s{st1}, s{swave}, 10")
    A(f"s_add_u32 s{st0}, s{st0}, s{st1}")
    A(f"buffer_load_dwordx4 v{va}, s[{sPH}:{sPH+3}], s{st0} offen lds")
    A.label(l1)
    A(f"s_lshl_b32 s{st0}, s{srb}, 2")
    A(f"s_add_u32 s{st0}, s{st0}, s{swave}")
    A(f"s_lshl_b32 s{st0}, s{st0}, 17")
    A(f"s_lshl_b32 s{st1}, s{shead}, 6")
    A(f"s_add_u32 s{st0}, s{st0}, s{st1}")
    A(f"v_and_b32 v{va+1}, 31, v{lane}")
    A(f"v_lshlrev_b32 v{va+1}, 11, v{va+1}")
    A(f"v_add_u32 v{va+1}, s{st0}, v{va+1}")
    A(f"v_lshl_add_u32 v{va+2}, v{hi}, 4, v{va+1}")
    A(f"v_add_u32 v{va+3}, 0x10000, v{va+2}")
    for st in range(2):
        for k in range(2):
            A(f"buffer_load_dwordx4 v[{QF+8*st+4*k}:{QF+8*st+4*k+3}], v{va+2+st}, s[{sQ}:{sQ+3}], 0 offen offset:{32*k}")
    A(f"s_lshl_b32 s{st1}, s{swave}, 6")
    A(f"v_lshlrev_b32 v{va+4}, 4, v{hi}")
    A(f"v_add_u32 v{va+4}, s{st1}, v{va+4}")
    A(f"v_add_u32 v{va+5}, 8192, v{va+4}")
    A(f"v_and_b32 v{t}, 31, v{lane}")
    A(f"v_lshl_add_u32 v{va+4}, v{t}, 8, v{va+4}")
    A(f"s_mul_i32 s{st0}, s{shead}, {NPART*ST_SZ}")
    for j in range(16): A(f"v_mov_b32 v{AC+j}, 0")
    for b in range(NPART//4):
        for p in range(4):
            A(f"s_add_u32 s{st1}, s{st0}, {(4*b+p)*ST_SZ}")
            A(f"buffer_load_dwordx4 v[{LD+16*p}:{LD+16*p+3}], v{va+4}, s[{sS}:{sS+3}], s{st1} offen")
            A(f"buffer_load_dwordx4 v[{LD+16*p+4}:{LD+16*p+7}], v{va+4}, s[{sS}:{sS+3}], s{st1} offen offset:32")
            A(f"buffer_load_dwordx4 v[{LD+16*p+8}:{LD+16*p+11}], v{va+5}, s[{sS}:{sS+3}], s{st1} offen")
            A(f"buffer_load_dwordx4 v[{LD+16*p+12}:{LD+16*p+15}], v{va+5}, s[{sS}:{sS+3}], s{st1} offen offset:32")
        for p in range(4):
            A(f"s_waitcnt vmcnt({4*(3-p)})")
            for j in range(16): A(f"v_add_f32 v{AC+j}, v{AC+j}, v{LD+16*p+j}")
    for i in range(8): A(f"v_cvt_pk_bf16_f32 v{LD+i}, v{AC+2*i}, v{AC+2*i+1}")
    A(f"s_lshl_b32 s{st1}, s{swave}, 10")
    A(f"v_add_u32 v{t}, s{st1}, v{va}")
    A(f"ds_write_b128 v{t}, v[{LD}:{LD+3}] offset:2048")
    A(f"ds_write_b128 v{t}, v[{LD+4}:{LD+7}] offset:{2048+4096}")
    A("s_waitcnt vmcnt(0) lgkmcnt(0)")
    A("s_barrier")
    for k in range(4):
        A(f"ds_read_b128 v[{KF+4*k}:{KF+4*k+3}], v{va} offset:{2048+1024*k}")
        A(f"ds_read_b128 v[{ZF+4*k}:{ZF+4*k+3}], v{va} offset:{2048+4096+1024*k}")
    wphi_addr(A, va+4, lane, t, True)
    wphi_reads(A, WF, va+4, 0, True)
    A(f"v_lshl_add_u32 v{va+2}, v{hi}, 3, v{va+1}")
    A(f"v_add_u32 v{va+3}, 0x10000, v{va+2}")
    A(f"s_mov_b32 s{st1}, 0x358637bd")
    A("s_waitcnt lgkmcnt(0)")
    for st in range(2):
        featmap(A, QF+8*st, QF+8*st+4, WF, WF+4, P, EP, t, PHI, sc)
        A("s_nop 1")
        for k in range(4):
            c0 = "0" if k == 0 else f"v[{NUM}:{NUM+15}]"
            A(f"v_mfma_f32_32x32x16_bf16 v[{NUM}:{NUM+15}], v[{KF+4*k}:{KF+4*k+3}], v[{PHI+4*k}:{PHI+4*k+3}], {c0}")
        for k in range(4):
            c0 = "0" if k == 0 else f"v[{DEN}:{DEN+15}]"
            A(f"v_mfma_f32_32x32x16_bf16 v[{DEN}:{DEN+15}], v[{ZF+4*k}:{ZF+4*k+3}], v[{PHI+4*k}:{PHI+4*k+3}], {c0}")
        A("s_nop 7"); A("s_nop 4")
        A(f"v_mov_b32 v{t+1}, s{st1}")
        round2(A, DEN, t+1, t)
        A(f"v_add_f32 v{DEN}, v{DEN}, v{t+1}")
        round2(A, DEN, t+1, t)
        A(f"v_rcp_f32 v{DEN}, v{DEN}")
        for i in range(8): round2(A, NUM+2*i, NUM+2*i+1, t)
        for i in range(16): A(f"v_mul_f32 v{NUM+i}, v{NUM+i}, v{DEN}")
        for gq in range(4):
            o = LD + 8*st + 2*gq
            A(f"v_cvt_pk_bf16_f32 v{o}, v{NUM+4*gq}, v{NUM+4*gq+1}")
            A(f"v_cvt_pk_bf16_f32 v{o+1}, v{NUM+4*gq+2}, v{NUM+4*gq+3}")
            A(f"buffer_store_dwordx2 v[{o}:{o+1}], v{va+2+st}, s[{sO}:{sO+3}], 0 offen offset:{16*gq}")
    return vend, 2048+8192

def k3_gemm(A, swave, lane, sbase, vbase, NSTAGE=4):
    s = sbase
    sX, sW, sO = s, s+4, s+8
    sP = s+12
    srb, snb, sxo, swo, st0 = s+20, s+21, s+22, s+23, s+24
    A(f"s_load_dwordx2 s[{sP}:{sP+1}], s[0:1], 72")
    A(f"s_load_dwordx2 s[{sP+2}:{sP+3}], s[0:1], 80")
    A(f"s_load_dwordx2 s[{sP+6}:{sP+7}], s[0:1], 96")
    wg_map(A, srb, snb, st0)
    A(f"s_lshl_b32 s{sxo}, s{srb}, 18")
    A(f"s_lshl_b32 s{swo}, s{snb}, 7")
    A("s_waitcnt lgkmcnt(0)")
    make_srd(A, sX, sP+6, MB4, WS_O); make_srd(A, sW, sP, 2<<20); make_srd(A, sO, sP+2, 2*MB4)
    g = gemm_core(A, 1, 2048, sX, sW, sxo, swo, swave, lane, s+28, vbase, NSTAGE)
    e = g.vfree
    va = g.vtmp
    A(f"s_lshr_b32 s{st0}, s{swave}, 1")
    A(f"s_lshl_b32 s{st0}, s{st0}, 18")
    A(f"s_lshl_b32 s{sxo}, s{srb}, 19")
    A(f"s_add_u32 s{st0}, s{st0}, s{sxo}")
    A(f"s_add_u32 s{st0}, s{st0}, s{swo}")
    A(f"s_and_b32 s{sxo}, s{swave}, 1")
    A(f"s_lshl_b32 s{sxo}, s{sxo}, 6")
    A(f"s_add_u32 s{st0}, s{st0}, s{sxo}")
    A(f"s_add_u32 s{st0}, s{st0}, 2048")
    A(f"v_and_b32 v{va}, 31, v{lane}")
    A(f"v_lshlrev_b32 v{va}, 12, v{va}")
    A(f"v_lshrrev_b32 v{va+1}, 5, v{lane}")
    A(f"v_lshl_add_u32 v{va}, v{va+1}, 3, v{va}")
    A(f"v_add_u32 v{va}, s{st0}, v{va}")
    A(f"v_add_u32 v{va+1}, 0x20000, v{va}")
    A("s_nop 7"); A("s_nop 4")
    for st in range(2):
        a = g.acc[0][st]
        for gq in range(4):
            o = e + 8*st + 2*gq
            A(f"v_cvt_pk_bf16_f32 v{o}, v{a+4*gq}, v{a+4*gq+1}")
            A(f"v_cvt_pk_bf16_f32 v{o+1}, v{a+4*gq+2}, v{a+4*gq+3}")
            A(f"buffer_store_dwordx2 v[{o}:{o+1}], v{va+st}, s[{sO}:{sO+3}], 0 offen offset:{16*gq}")
    return g.vend, g.lds
```

```python
from asmlib import *
from parta import *
from partb import *
A = Asm()
descs = []; launches = []
def prologue(ngrid):
    A(f"s_cmp_ge_u32 s2, {ngrid}")
    A("s_cbranch_scc1 9f")
    A("v_lshrrev_b32 v1, 6, v0")
    A("s_nop 0")
    A("v_readfirstlane_b32 s3, v1")
    A("v_and_b32 v0, 63, v0")
    A("s_nop 3")
    A("s_lshl_b32 s4, s2, 2")
    A("s_add_u32 s4, s4, s3")
def fin(name, ve, grid, lds, sg=100):
    A.raw("9:"); A("s_endpgm"); descs.append(kernel_desc(name, ve, sg)); launches.append(f"; @launch kernel={name} grid=({grid},1,1) block=(256,1,1) lds={lds}")
kernel_begin(A, "apre_kernel"); prologue(128)
ve = apre_job(A, 4, 8, 2, 8, 0); fin("apre_kernel", ve, 128, 0)
kernel_begin(A, "k1_kernel"); prologue(256)
ve, lds = k1_gemm(A, 3, 0, 8, 2); fin("k1_kernel", ve, 256, lds)
kernel_begin(A, "conv_kernel"); prologue(256)
A(f"s_mul_i32 s5, s3, {CONV_LDS}")
ve = conv_job(A, 4, 5, 8, 2, 0); fin("conv_kernel", ve, 256, 4*CONV_LDS)
kernel_begin(A, "k2_kernel"); prologue(256)
ve, lds = k2_o(A, 2, 3, 0, 8, 2); fin("k2_kernel", ve, 256, lds)
kernel_begin(A, "apost_kernel"); prologue(128)
ve = apost_job(A, 4, 8, 2, 0); fin("apost_kernel", ve, 128, 0)
kernel_begin(A, "k3_kernel"); prologue(256)
ve, lds = k3_gemm(A, 3, 0, 8, 2); fin("k3_kernel", ve, 256, lds)
hdr = "\n".join(launches) + '\n.amdgcn_target "amdgcn-amd-amdhsa--gfx950"\n.text\n'
open("v1.s", "w").write(hdr + A.text() + '.section .rodata,"a"\n' + "".join(descs))
```

```python
class Asm:
    def __init__(self):
        self.lines = []
        self.lbl = 0
    def __call__(self, s):
        for l in s.strip("\n").split("\n"):
            self.lines.append("    " + l.strip())
    def label(self, name):
        self.lines.append(name + ":")
    def newlabel(self, p="L"):
        self.lbl += 1
        return f"{p}_{self.lbl}"
    def raw(self, s):
        self.lines.append(s)
    def text(self):
        return "\n".join(self.lines) + "\n"

def vr(b, n=1):
    return f"v{b}" if n == 1 else f"v[{b}:{b+n-1}]"
def sr(b, n=1):
    return f"s{b}" if n == 1 else f"s[{b}:{b+n-1}]"
def ar(b, n=1):
    return f"a{b}" if n == 1 else f"a[{b}:{b+n-1}]"

def kernel_begin(A, name):
    A.raw(f".globl {name}")
    A.raw(".p2align 8")
    A.raw(f".type {name},@function")
    A.raw(f"{name}:")

def kernel_desc(name, vgpr, sgpr, accum=None):
    if accum is None:
        accum = (vgpr + 3)//4*4
    return f""".p2align 6
.amdhsa_kernel {name}
  .amdhsa_next_free_vgpr {vgpr}
  .amdhsa_next_free_sgpr {sgpr}
  .amdhsa_accum_offset {accum}
  .amdhsa_group_segment_fixed_size 0
  .amdhsa_kernarg_size 104
  .amdhsa_user_sgpr_count 2
  .amdhsa_user_sgpr_kernarg_segment_ptr 1
  .amdhsa_system_sgpr_workgroup_id_x 1
.end_amdhsa_kernel
"""

def make_srd(A, d, ptr, nbytes, off=0):
    if off:
        A(f"s_add_u32 s{d}, s{ptr}, {off}")
        A(f"s_addc_u32 s{d+1}, s{ptr+1}, 0")
    else:
        A(f"s_mov_b32 s{d}, s{ptr}")
        A(f"s_mov_b32 s{d+1}, s{ptr+1}")
    A(f"s_mov_b32 s{d+2}, {nbytes}")
    A(f"s_mov_b32 s{d+3}, 0x00020000")

class VM:
    def __init__(self, A):
        self.A = A; self.q = []
    def issue(self, text, tag=None):
        self.A(text); self.q.append(tag)
    def wait(self, tag):
        idx = [i for i, t in enumerate(self.q) if t == tag]
        if not idx: return
        n = len(self.q) - 1 - idx[-1]
        assert n <= 63, n
        self.A(f"s_waitcnt vmcnt({n})")
        self.q = self.q[idx[-1]+1:]
    def wait_all(self):
        self.A("s_waitcnt vmcnt(0)"); self.q = []

class Rec:
    def __init__(self): self.items = []
    def __call__(self, s):
        for l in s.strip("\n").split("\n"): self.items.append(("i", l.strip()))
    def vm(self, text, tag=None): self.items.append(("v", text, tag))
    def wait(self, tag): self.items.append(("w", tag))

def play(A, vm, items, n=None):
    k = 0
    while items and (n is None or k < n):
        it = items.pop(0)
        if it[0] == "i": A(it[1])
        elif it[0] == "v": vm.issue(it[1], it[2])
        else: vm.wait(it[1])
        k += 1
```

```python
from asmlib import *
from parta import *

class G: pass

def gemm_core3(A, NT, wpitch, sX, sW, sxoff, swoff, swave, lane, sbase, vbase, mode, NSTAGE=3, vtile_swapped=(), KT=16, stamp=None, fillers=None, fill_waves=None, fill_start=2, per_mfma=4):
    g = G()
    STAGE = 16384 + NT*8192
    g.lds = STAGE*NSTAGE
    NS = 1 if mode == "sym8" else 2
    NL = 8 if mode == "sym8" else 4
    nX = 16//NL; nW = NT*8//NL
    ND = nX + nW
    s = sbase
    sT0, sT1, sXs, sLw, sM = s, s+1, s+2, s+3, s+4
    sMX, sMW = sM + nW, sM + nW + 1
    g.send = sM + nW + 2
    v = vbase
    vXo = v
    vWo = v+2
    vt = v+3
    vXa = v+6
    vWa = vXa + 4*NSTAGE
    vfr = (vWa + NSTAGE + 3)//4*4
    FR = (NS+NT)*4
    vacc = vfr + 2*FR
    g.acc = [[vacc + (t*NS+st)*16 for st in range(NS)] for t in range(NT)]
    g.vend = vacc + NT*NS*16
    g.vfree = vfr
    g.vtmp = v
    g.lend = A.newlabel("Lend")
    vm = VM(A)
    def loader_setup():
        A(f"v_lshrrev_b32 v{vt}, 3, v{lane}")
        A(f"v_and_b32 v{vt+1}, 7, v{lane}")
        A(f"v_lshrrev_b32 v{vt+2}, 4, v{lane}")
        A(f"v_xor_b32 v{vXo}, v{vt+1}, v{vt+2}")
        A(f"v_xor_b32 v{vXo+1}, 4, v{vXo}")
        for j in range(2):
            A(f"v_lshlrev_b32 v{vXo+j}, 4, v{vXo+j}")
            A(f"v_lshl_add_u32 v{vXo+j}, v{vt}, 11, v{vXo+j}")
        A(f"v_and_b32 v{vt+2}, 2, v{vt}")
        A(f"v_lshlrev_b32 v{vt+2}, 1, v{vt+2}")
        A(f"v_xor_b32 v{vWo}, v{vt+1}, v{vt+2}")
        A(f"v_lshlrev_b32 v{vWo}, 4, v{vWo}")
        A(f"s_mov_b32 s{sT0}, {wpitch}")
        A(f"v_mul_lo_u32 v{vt+2}, v{vt}, s{sT0}")
        A(f"v_add_u32 v{vWo}, v{vWo}, v{vt+2}")
        A(f"s_and_b32 s{sLw}, s{swave}, {NL-1}")
        A(f"s_mul_i32 s{sT0}, s{sLw}, {nX*8*2048}")
        A(f"s_add_u32 s{sXs}, s{sxoff}, s{sT0}")
        A(f"s_mul_i32 s{sMX}, s{sLw}, {nX*1024}")
        A(f"s_mul_i32 s{sMW}, s{sLw}, {nW*1024}")
        for j in range(nW):
            A(f"s_mul_i32 s{sT0}, s{sLw}, {nW}")
            A(f"s_add_u32 s{sT0}, s{sT0}, {j}")
            A(f"s_lshr_b32 s{sT1}, s{sT0}, 3")
            A(f"s_and_b32 s{sT0}, s{sT0}, 7")
            A(f"s_lshl_b32 s{sT1}, s{sT1}, 11")
            A(f"s_mul_i32 s{sT0}, s{sT0}, {8*wpitch}")
            A(f"s_add_u32 s{sM+j}, s{sT0}, s{sT1}")
            A(f"s_add_u32 s{sM+j}, s{sM+j}, s{swoff}")
    def dma1(kt, idx):
        slot = kt % NSTAGE
        if idx < nX:
            i = idx
            A(f"s_add_u32 m0, s{sMX}, {slot*STAGE + i*1024}")
            A(f"s_add_u32 s{sT1}, s{sXs}, {i*16384 + kt*128}")
            vm.issue(f"buffer_load_dwordx4 v{vXo + (i&1)}, s[{sX}:{sX+3}], s{sT1} offen lds", ("st", kt))
        else:
            j = idx - nX
            A(f"s_add_u32 m0, s{sMW}, {slot*STAGE + 16384 + j*1024}")
            A(f"s_add_u32 s{sT1}, s{sM+j}, {kt*64*wpitch}")
            vm.issue(f"buffer_load_dwordx4 v{vWo}, s[{sW}:{sW+3}], s{sT1} offen lds", ("st", kt))
    def dma(kt):
        for idx in range(ND): dma1(kt, idx)
    PD = NSTAGE - 1
    if mode == "spec":
        lc = A.newlabel("Lcomp")
        A(f"s_cmp_lt_u32 s{swave}, 4")
        A(f"s_cbranch_scc1 {lc}")
        loader_setup()
        for kt in range(PD): dma(kt)
        for kt in range(KT):
            vm.wait(("st", kt))
            A("s_barrier")
            if kt+PD < KT: dma(kt+PD)
        A(f"s_branch {g.lend}")
        A.label(lc)
        vm = VM(A)
    else:
        loader_setup()
        for kt in range(PD): dma(kt)
    A(f"v_and_b32 v{vt}, 31, v{lane}")
    A(f"v_lshrrev_b32 v{vt+1}, 1, v{vt}")
    A(f"v_and_b32 v{vt+1}, 7, v{vt+1}")
    A(f"v_lshrrev_b32 v{vt+2}, 5, v{lane}")
    A(f"v_xor_b32 v{vt+1}, v{vt+1}, v{vt+2}")
    A(f"s_lshr_b32 s{sT0}, s{swave}, 1")
    A(f"s_lshl_b32 s{sT0}, s{sT0}, {12 if NS==1 else 13}")
    A(f"v_lshlrev_b32 v{vt}, 7, v{vt}")
    A(f"v_add_u32 v{vt}, s{sT0}, v{vt}")
    for ks in range(4):
        A(f"v_xor_b32 v{vXa+ks}, {2*ks}, v{vt+1}")
        A(f"v_lshl_add_u32 v{vXa+ks}, v{vXa+ks}, 4, v{vt}")
        for sl in range(1, NSTAGE):
            A(f"v_add_u32 v{vXa+4*sl+ks}, {sl*STAGE}, v{vXa+ks}")
    A(f"v_lshrrev_b32 v{vt}, 4, v{lane}")
    A(f"v_and_b32 v{vt+1}, 1, v{vt}")
    A(f"v_lshlrev_b32 v{vt+1}, 1, v{vt+1}")
    A(f"v_bfe_u32 v{vt+2}, v{lane}, 1, 1")
    A(f"v_add_u32 v{vt+1}, v{vt+1}, v{vt+2}")
    A(f"s_and_b32 s{sT0}, s{swave}, 1")
    A(f"s_lshl_b32 s{sT0}, s{sT0}, 2")
    A(f"v_add_u32 v{vt+1}, s{sT0}, v{vt+1}")
    A(f"v_bfe_u32 v{vt+2}, v{lane}, 3, 1")
    A(f"v_lshlrev_b32 v{vt+2}, 2, v{vt+2}")
    A(f"v_xor_b32 v{vt+1}, v{vt+1}, v{vt+2}")
    A(f"v_lshlrev_b32 v{vWa}, 4, v{vt+1}")
    A(f"v_and_b32 v{vt+1}, 1, v{lane}")
    A(f"v_lshl_add_u32 v{vWa}, v{vt+1}, 3, v{vWa}")
    A(f"v_lshrrev_b32 v{vt}, 1, v{vt}")
    A(f"v_lshlrev_b32 v{vt}, 3, v{vt}")
    A(f"v_bfe_u32 v{vt+1}, v{lane}, 2, 2")
    A(f"v_add_u32 v{vt}, v{vt}, v{vt+1}")
    A(f"v_lshl_add_u32 v{vWa}, v{vt}, 7, v{vWa}")
    for sl in range(1, NSTAGE):
        A(f"v_add_u32 v{vWa+sl}, {sl*STAGE}, v{vWa}")
    for j in range(NT*NS*16): A(f"v_mov_b32 v{vacc+j}, 0")
    def fx(set_, st): return vfr + set_*FR + st*4
    def fw(set_, t): return vfr + set_*FR + NS*4 + t*4
    def reads(kt, ks):
        slot = kt % NSTAGE; set_ = (kt*4+ks) % 2
        for st in range(NS):
            A(f"ds_read_b128 v[{fx(set_,st)}:{fx(set_,st)+3}], v{vXa+4*slot+ks} offset:{st*4096}")
        for t in range(NT):
            for jh in range(2):
                A(f"ds_read_b64_tr_b16 v[{fw(set_,t)+2*jh}:{fw(set_,t)+2*jh+1}], v{vWa+slot} offset:{16384 + t*8192 + (16*ks+4*jh)*128}")
    def mfma_list(kt, ks):
        set_ = (kt*4+ks) % 2
        out = []
        for t in range(NT):
            for st in range(NS):
                a = g.acc[t][st]
                x = f"v[{fx(set_,st)}:{fx(set_,st)+3}]"; w = f"v[{fw(set_,t)}:{fw(set_,t)+3}]"
                if t in vtile_swapped: out.append(f"v_mfma_f32_32x32x16_bf16 v[{a}:{a+15}], {x}, {w}, v[{a}:{a+15}]")
                else:                  out.append(f"v_mfma_f32_32x32x16_bf16 v[{a}:{a+15}], {w}, {x}, v[{a}:{a+15}]")
        return out
    def mainloop(vm, pre, body):
        if pre: play(A, vm, pre)
        if mode == "sym8": vm.wait(("st", 0))
        A("s_barrier")
        if stamp: stamp()
        reads(0, 0)
        for kt in range(KT):
            pend = list(range(ND)) if (mode == "sym8" and kt+PD < KT) else []
            mi = 0
            for ks in range(4):
                A("s_waitcnt lgkmcnt(0)")
                if ks < 3:
                    reads(kt, ks+1)
                elif kt+1 < KT:
                    if mode == "sym8":
                        while pend: dma1(kt+PD, pend.pop(0))
                        vm.wait(("st", kt+1))
                    A("s_barrier")
                    reads(kt+1, 0)
                for m in mfma_list(kt, ks):
                    A(m)
                    mi += 1
                    if pend and ks < 3 and (mi % 2 == 1):
                        dma1(kt+PD, pend.pop(0))
                    if body and kt >= fill_start: play(A, vm, body, per_mfma)
        if body: play(A, vm, body)
        if stamp: stamp()
    import copy
    if fillers and fill_waves is not None:
        lb = A.newlabel("Lnofill"); lj = A.newlabel("Ljoin")
        A(f"s_cmp_ge_u32 s{swave}, {fill_waves}")
        A(f"s_cbranch_scc1 {lb}")
        q0 = list(vm.q)
        if stamp: n0 = stamp.n
        mainloop(vm, list(fillers[0].items), list(fillers[1].items))
        A(f"s_branch {lj}")
        A.label(lb)
        vm.q = q0
        if stamp: stamp.n = n0
        mainloop(vm, None, None)
        A.label(lj)
    elif fillers:
        mainloop(vm, list(fillers[0].items), list(fillers[1].items))
    else:
        mainloop(vm, None, None)
    return g
```

```python
from asmlib import *
from parta import WS_KVT, WS_Y2T, WS_Q, WS_O, WS_ST, MB4, unpack, round2

def apre_rec(sjob, sbase, vbase, lane, R=4, mod=''):
    P = Rec(); B = Rec()
    sK, sV, sW, sO = sbase, sbase+4, sbase+8, sbase+12
    sP = sbase+16; st = sbase+24
    P(f"s_load_dwordx2 s[{sP}:{sP+1}], s[0:1], 8")
    P(f"s_load_dwordx2 s[{sP+2}:{sP+3}], s[0:1], 16")
    P(f"s_load_dwordx2 s[{sP+4}:{sP+5}], s[0:1], 24")
    P(f"s_load_dwordx2 s[{sP+6}:{sP+7}], s[0:1], 96")
    P(f"s_lshr_b32 s{st}, s{sjob}, 4")
    P(f"s_and_b32 s{st+1}, s{sjob}, 15")
    P(f"s_mul_i32 s{st}, s{st}, {8*R}")
    P(f"s_lshl_b32 s{st+1}, s{st+1}, 6")
    v = vbase
    vr0, vch = v, v+1
    vaddr = v+2
    vW = (vaddr + R+3 + 3)//4*4
    vK = vW+16
    vV = vK + (R+3)*4
    vw = vaddr+1
    vk = vV + R*4
    vv = vk + R+3
    vt = vv + R
    vo = (vt+5+3)//4*4
    vend = vo + 2*(R//2)
    P(f"v_and_b32 v{vch}, 7, v{lane}")
    P(f"v_lshrrev_b32 v{vr0}, 3, v{lane}")
    P(f"v_mul_u32_u24 v{vr0}, {R}, v{vr0}")
    P(f"v_add_u32 v{vr0}, s{st}, v{vr0}")
    P(f"v_lshlrev_b32 v{vch}, 3, v{vch}")
    P(f"v_add_u32 v{vch}, s{st+1}, v{vch}")
    P("s_waitcnt lgkmcnt(0)")
    make_srd(P, sK, sP, MB4); make_srd(P, sV, sP+2, MB4); make_srd(P, sW, sP+4, 8192); make_srd(P, sO, sP+6, MB4, WS_KVT)
    P(f"v_lshlrev_b32 v{vaddr}, 11, v{vr0}")
    P(f"v_lshl_add_u32 v{vaddr}, v{vch}, 1, v{vaddr}")
    P(f"v_add_u32 v{vaddr}, {(-3*2048) & 0xffffffff}, v{vaddr}")
    for i in range(1, R+3):
        P(f"v_add_u32 v{vaddr+i}, {i*2048}, v{vaddr}")
    P(f"v_lshlrev_b32 v{vt}, 3, v{vch}")
    for j in range(4):
        P.vm(f"buffer_load_dwordx4 v[{vW+4*j}:{vW+4*j+3}], v{vt}, s[{sW}:{sW+3}], 0 offen offset:{16*j}", "apre")
    for i in range(R+3):
        P.vm(f"buffer_load_dwordx4 v[{vK+4*i}:{vK+4*i+3}], v{vaddr+i}, s[{sK}:{sK+3}], 0 offen", "apre")
    for i in range(R):
        P.vm(f"buffer_load_dwordx4 v[{vV+4*i}:{vV+4*i+3}], v{vaddr+i+3}, s[{sV}:{sV+3}], 0 offen", "apre")
    vob = vaddr
    P(f"v_sub_u32 v{vt}, {2048-R}, v{vr0}")
    P(f"v_lshlrev_b32 v{vt}, 1, v{vt}")
    P(f"v_lshl_add_u32 v{vob}, v{vch}, 12, v{vt}")
    B.wait("apre")
    a0, a1, p0, p1, tmp = vt, vt+1, vt+2, vt+3, vt+4
    for c in range(8):
        o = vo + (R//2)*(c % 2)
        for j in range(4): unpack(B, vw+j, vW+2*c+j//2, j%2)
        for i in range(R+3): unpack(B, vk+i, vK+4*i+c//2, c%2)
        for i in range(R): unpack(B, vv+i, vV+4*i+c//2, c%2)
        for m in range(R//2):
            s = 2*m
            B(f"v_mul_f32 v{a0}, v{vk+s}, v{vw+3}")
            B(f"v_mul_f32 v{a1}, v{vk+s+1}, v{vw+3}")
            round2(B, a0, a1, tmp)
            for t in range(1, 4):
                B(f"v_mul_f32 v{p0}, v{vk+s+t}, v{vw+3-t}")
                B(f"v_mul_f32 v{p1}, v{vk+s+1+t}, v{vw+3-t}")
                round2(B, p0, p1, tmp)
                B(f"v_add_f32 v{a0}, v{a0}, v{p0}")
                B(f"v_add_f32 v{a1}, v{a1}, v{p1}")
                round2(B, a0, a1, tmp)
            B(f"v_mul_f32 v{a0}, v{a0}, v{vv+s}")
            B(f"v_mul_f32 v{a1}, v{a1}, v{vv+s+1}")
            B(f"v_cvt_pk_bf16_f32 v{o + R//2-1-m}, v{a1}, v{a0}")
        w = {2: "dword", 4: "dwordx2", 8: "dwordx4"}[R]
        B(f"s_mov_b32 s{st}, {4096*c}")
        B.vm(f"buffer_store_{w} {vr(o, R//2)}, v{vob}, s[{sO}:{sO+3}], s{st} offen{mod}", "apst")
    return P, B, vend, st+2

def apost_rec(sjob, sbase, vbase, lane):
    P = Rec(); B = Rec()
    sQ, sY, sO = sbase, sbase+4, sbase+8
    sP = sbase+12; st = sbase+20
    P(f"s_load_dwordx2 s[{sP}:{sP+1}], s[0:1], 0")
    P(f"s_load_dwordx2 s[{sP+2}:{sP+3}], s[0:1], 80")
    P(f"s_load_dwordx2 s[{sP+6}:{sP+7}], s[0:1], 96")
    P(f"s_lshr_b32 s{st}, s{sjob}, 4")
    P(f"s_and_b32 s{st+1}, s{sjob}, 15")
    P(f"s_lshl_b32 s{st}, s{st}, 5")
    P(f"s_lshl_b32 s{st+1}, s{st+1}, 6")
    v = vbase
    vr0, vch, vqa, vya, voa, vt = v, v+1, v+2, v+3, v+4, v+5
    vQ = (v+8+3)//4*4
    vY = vQ+16
    vo = vY+16
    vend = vo+8
    P(f"v_and_b32 v{vch}, 7, v{lane}")
    P(f"v_lshlrev_b32 v{vch}, 3, v{vch}")
    P(f"v_add_u32 v{vch}, s{st+1}, v{vch}")
    P(f"v_lshrrev_b32 v{vr0}, 3, v{lane}")
    P(f"v_lshlrev_b32 v{vr0}, 2, v{vr0}")
    P(f"v_add_u32 v{vr0}, s{st}, v{vr0}")
    P(f"v_lshlrev_b32 v{vqa}, 11, v{vr0}")
    P(f"v_lshl_add_u32 v{vqa}, v{vch}, 1, v{vqa}")
    P(f"v_lshlrev_b32 v{voa}, 12, v{vr0}")
    P(f"v_lshl_add_u32 v{voa}, v{vch}, 1, v{voa}")
    P(f"v_lshlrev_b32 v{vya}, 12, v{vch}")
    P(f"v_lshl_add_u32 v{vya}, v{vr0}, 1, v{vya}")
    P("s_waitcnt lgkmcnt(0)")
    make_srd(P, sQ, sP, MB4); make_srd(P, sO, sP+2, 2*MB4); make_srd(P, sY, sP+6, MB4, WS_Y2T)
    for i in range(4):
        P(f"s_mov_b32 s{st+2}, {2048*i}")
        P.vm(f"buffer_load_dwordx4 v[{vQ+4*i}:{vQ+4*i+3}], v{vqa}, s[{sQ}:{sQ+3}], s{st+2} offen", "apo")
    P.split = len(P.items)
    for c in range(8):
        P(f"s_mov_b32 s{st+3}, {4096*c}")
        P.vm(f"buffer_load_dwordx2 v[{vY+2*c}:{vY+2*c+1}], v{vya}, s[{sY}:{sY+3}], s{st+3} offen", "apo")
    B.wait("apo")
    for i in range(4):
        o = vo + 4*(i%2)
        for j in range(4):
            unpack(B, vt, vQ+4*i+j, 0); unpack(B, vt+1, vQ+4*i+j, 1)
            unpack(B, vt+2, vY+2*(2*j)+i//2, i%2)
            B(f"v_mul_f32 v{vt}, v{vt}, v{vt+2}")
            unpack(B, vt+2, vY+2*(2*j+1)+i//2, i%2)
            B(f"v_mul_f32 v{vt+1}, v{vt+1}, v{vt+2}")
            B(f"v_cvt_pk_bf16_f32 v{o+j}, v{vt}, v{vt+1}")
        B(f"s_mov_b32 s{st+2}, {4096*i}")
        B.vm(f"buffer_store_dwordx4 v[{o}:{o+3}], v{voa}, s[{sO}:{sO+3}], s{st+2} offen", "apos")
    return P, B, vend, st+4
```

```python
from asmlib import *
from parta import *
from gemm import *

ST_SZ = 8448
NPART = 32
LOG2E = 0x3fb8aa3b

def xhalf(A, op, a, t0, t1):
    A(f"v_mov_b32 v{t0}, v{a}")
    A(f"v_mov_b32 v{t1}, v{a}")
    A("s_nop 1")
    A(f"v_permlane32_swap_b32 v{t0}, v{t1}")
    A("s_nop 1")
    A(f"{op} v{a}, v{t0}, v{t1}")

def featmap(A, b0, b1, w0, w1, P, EP, t, out, sc):
    A(f"v_mfma_f32_32x32x16_bf16 v[{P}:{P+15}], v[{w0}:{w0+3}], v[{b0}:{b0+3}], 0")
    A(f"v_mfma_f32_32x32x16_bf16 v[{P}:{P+15}], v[{w1}:{w1+3}], v[{b1}:{b1+3}], v[{P}:{P+15}]")
    A("s_nop 7"); A("s_nop 4")
    for i in range(8): round2(A, P+2*i, P+2*i+1, t)
    mx, mn, sp, sm = t+1, t+2, t+3, t+4
    A(f"v_max3_f32 v{mx}, v{P}, v{P+1}, v{P+2}")
    A(f"v_min3_f32 v{mn}, v{P}, v{P+1}, v{P+2}")
    for i in range(3, 15, 2):
        A(f"v_max3_f32 v{mx}, v{mx}, v{P+i}, v{P+i+1}")
        A(f"v_min3_f32 v{mn}, v{mn}, v{P+i}, v{P+i+1}")
    A(f"v_max_f32 v{mx}, v{mx}, v{P+15}")
    A(f"v_min_f32 v{mn}, v{mn}, v{P+15}")
    xhalf(A, "v_max_f32", mx, t+5, t+6)
    xhalf(A, "v_min_f32", mn, t+5, t+6)
    for i in range(16):
        A(f"v_sub_f32 v{EP+i}, v{P+i}, v{mx}")
        A(f"v_sub_f32 v{P+i}, v{mn}, v{P+i}")
        A(f"v_mul_f32 v{EP+i}, s{sc}, v{EP+i}")
        A(f"v_mul_f32 v{P+i}, s{sc}, v{P+i}")
        A(f"v_exp_f32 v{EP+i}, v{EP+i}")
        A(f"v_exp_f32 v{P+i}, v{P+i}")
    A("s_nop 0")
    A(f"v_add_f32 v{sp}, v{EP}, v{EP+1}")
    A(f"v_add_f32 v{sm}, v{P}, v{P+1}")
    for i in range(2, 16):
        A(f"v_add_f32 v{sp}, v{sp}, v{EP+i}")
        A(f"v_add_f32 v{sm}, v{sm}, v{P+i}")
    xhalf(A, "v_add_f32", sp, t+5, t+6)
    xhalf(A, "v_add_f32", sm, t+5, t+6)
    A(f"v_rcp_f32 v{sp}, v{sp}")
    A(f"v_rcp_f32 v{sm}, v{sm}")
    A("s_nop 0")
    for i in range(16):
        A(f"v_mul_f32 v{EP+i}, v{EP+i}, v{sp}")
        A(f"v_mul_f32 v{P+i}, v{P+i}, v{sm}")
    for i in range(8):
        A(f"v_cvt_pk_bf16_f32 v{out+i}, v{EP+2*i}, v{EP+2*i+1}")
        A(f"v_cvt_pk_bf16_f32 v{out+8+i}, v{P+2*i}, v{P+2*i+1}")

def wg_map(A, srb, scol, t0):
    A(f"s_and_b32 s{t0}, s2, 1")
    A(f"s_lshl_b32 s{srb}, s{t0}, 3")
    A(f"s_bfe_u32 s{t0}, s2, 0x30003")
    A(f"s_add_u32 s{srb}, s{srb}, s{t0}")
    A(f"s_bfe_u32 s{t0}, s2, 0x20001")
    A(f"s_lshl_b32 s{scol}, s{t0}, 2")
    A(f"s_bfe_u32 s{t0}, s2, 0x20006")
    A(f"s_add_u32 s{scol}, s{scol}, s{t0}")

def wphi_addr(A, dst, lane, t, natural):
    A(f"v_lshrrev_b32 v{t}, 5, v{lane}")
    A(f"v_lshlrev_b32 v{t}, {3 if natural else 2}, v{t}")
    A(f"v_bfe_u32 v{dst}, v{lane}, 2, 2")
    A(f"v_add_u32 v{t}, v{t}, v{dst}")
    A(f"v_lshlrev_b32 v{t}, 6, v{t}")
    A(f"v_bfe_u32 v{dst}, v{lane}, 4, 1")
    A(f"v_lshl_add_u32 v{t}, v{dst}, 5, v{t}")
    A(f"v_and_b32 v{dst}, 3, v{lane}")
    A(f"v_lshl_add_u32 v{dst}, v{dst}, 3, v{t}")

def wphi_reads(A, w, addr, off, natural):
    for k in range(2):
        for jh in range(2):
            row = 16*k + (4*jh if natural else 8*jh)
            A(f"ds_read_b64_tr_b16 v[{w+4*k+2*jh}:{w+4*k+2*jh+1}], v{addr} offset:{off + row*64}")

def k1_gemm(A, swave, lane, sbase, vbase, stamp=None):
    s = sbase
    sX, sW, sPH, sQ, sS = s, s+4, s+8, s+12, s+16
    sP = s+20
    srb, shp, sxo, swo, st0, shead, sc = s+28, s+29, s+30, s+31, s+32, s+33, s+34
    A(f"s_load_dwordx2 s[{sP}:{sP+1}], s[0:1], 48")
    A(f"s_load_dwordx2 s[{sP+2}:{sP+3}], s[0:1], 56")
    A(f"s_load_dwordx2 s[{sP+4}:{sP+5}], s[0:1], 64")
    A(f"s_load_dwordx2 s[{sP+6}:{sP+7}], s[0:1], 96")
    wg_map(A, srb, shp, st0)
    A(f"s_lshl_b32 s{sxo}, s{srb}, 18")
    A(f"s_lshl_b32 s{swo}, s{shp}, 7")
    A(f"s_and_b32 s{st0}, s{swave}, 1")
    A(f"s_lshl_b32 s{shead}, s{shp}, 1")
    A(f"s_add_u32 s{shead}, s{shead}, s{st0}")
    A(f"s_mov_b32 s{sc}, {LOG2E}")
    A("s_waitcnt lgkmcnt(0)")
    make_srd(A, sX, sP, MB4); make_srd(A, sW, sP+2, 6<<20); make_srd(A, sPH, sP+4, 65536)
    make_srd(A, sQ, sP+6, MB4, WS_Q); make_srd(A, sS, sP+6, 32*NPART*ST_SZ, WS_ST)
    PH_OFF = 3*(16384+3*8192)
    vt = vbase
    A(f"v_lshlrev_b32 v{vt}, 4, v{lane}")
    for i in range(2):
        A(f"s_lshl_b32 s{st0}, s{swave}, 11")
        A(f"s_add_u32 m0, s{st0}, {PH_OFF + i*1024}")
        A(f"s_lshl_b32 s{st0}, s{shead}, 11")
        A(f"s_add_u32 s{st0}, s{st0}, {i*1024}")
        A(f"buffer_load_dwordx4 v{vt}, s[{sPH}:{sPH+3}], s{st0} offen lds")
    g = gemm_core(A, 3, 6144, sX, sW, sxo, swo, swave, lane, s+36, vbase, 3, vtile_swapped=(2,), stamp=stamp)
    e = (g.vend+3)//4*4
    P, EP, PHI, TD = e, e+16, e+32, e+48
    KVA = e+64
    f = g.vfree
    ID = f
    WF = f+8
    t = f+16
    ZS = f+24
    va = f+26
    vend = e+96
    Q, K, V = g.acc
    hi = va+1
    A(f"v_lshrrev_b32 v{hi}, 5, v{lane}")
    wphi_addr(A, va, lane, t, False)
    A(f"s_lshl_b32 s{st0}, s{swave}, 11")
    A(f"s_add_u32 s{st0}, s{st0}, {PH_OFF}")
    A(f"v_add_u32 v{va}, s{st0}, v{va}")
    wphi_reads(A, WF, va, 0, False)
    A(f"v_and_b32 v{t}, 31, v{lane}")
    A(f"v_lshlrev_b32 v{t+1}, 2, v{hi}")
    A(f"v_sub_u32 v{t}, v{t}, v{t+1}")
    A(f"v_mov_b32 v{t+2}, 0x3f80")
    A(f"v_mov_b32 v{t+3}, 0x3f800000")
    for k in range(2):
        for i in range(4):
            j = 2*i
            f0 = 16*k + 8*(j//4) + j%4
            A(f"v_cmp_eq_u32 vcc, {f0}, v{t}")
            A("s_nop 1")
            A(f"v_cndmask_b32 v{ID+4*k+i}, 0, v{t+2}, vcc")
            A(f"v_cmp_eq_u32 vcc, {f0+1}, v{t}")
            A("s_nop 1")
            A(f"v_cndmask_b32 v{t+1}, 0, v{t+3}, vcc")
            A(f"v_or_b32 v{ID+4*k+i}, v{ID+4*k+i}, v{t+1}")
    A(f"s_lshr_b32 s{st0}, s{swave}, 1")
    A(f"s_lshl_b32 s{st0}, s{st0}, 17")
    A(f"s_add_u32 s{st0}, s{st0}, s{sxo}")
    A(f"v_and_b32 v{va+2}, 31, v{lane}")
    A(f"v_lshlrev_b32 v{va+2}, 11, v{va+2}")
    A(f"v_lshl_add_u32 v{va+2}, v{hi}, 3, v{va+2}")
    A(f"v_add_u32 v{va+2}, s{st0}, v{va+2}")
    A(f"s_lshl_b32 s{st0}, s{shead}, 6")
    A(f"v_add_u32 v{va+2}, s{st0}, v{va+2}")
    A(f"v_add_u32 v{va+3}, 0x10000, v{va+2}")
    for st in range(2):
        for gq in range(4):
            A(f"v_cvt_pk_bf16_f32 v{P+8*st+2*gq}, v{Q[st]+4*gq}, v{Q[st]+4*gq+1}")
            A(f"v_cvt_pk_bf16_f32 v{P+8*st+2*gq+1}, v{Q[st]+4*gq+2}, v{Q[st]+4*gq+3}")
            A(f"buffer_store_dwordx2 v[{P+8*st+2*gq}:{P+8*st+2*gq+1}], v{va+2+st}, s[{sQ}:{sQ+3}], 0 offen offset:{16*gq}")
    for st in range(2):
        for i in range(8):
            A(f"v_cvt_pk_bf16_f32 v{K[st]+i}, v{K[st]+2*i}, v{K[st]+2*i+1}")
            A(f"v_cvt_pk_bf16_f32 v{V[st]+i}, v{V[st]+2*i}, v{V[st]+2*i+1}")
    A(f"v_mov_b32 v{ZS}, 0"); A(f"v_mov_b32 v{ZS+1}, 0")
    A("s_waitcnt lgkmcnt(0)")
    for st in range(2):
        featmap(A, K[st], K[st]+4, WF, WF+4, P, EP, t, PHI, sc)
        for sg in range(2):
            A("s_nop 1")
            A(f"v_mfma_f32_32x32x16_bf16 v[{TD}:{TD+15}], v[{PHI+8*sg}:{PHI+8*sg+3}], v[{ID}:{ID+3}], 0")
            A(f"v_mfma_f32_32x32x16_bf16 v[{TD}:{TD+15}], v[{PHI+8*sg+4}:{PHI+8*sg+7}], v[{ID+4}:{ID+7}], v[{TD}:{TD+15}]")
            A("s_nop 7"); A("s_nop 4")
            for i in range(16): A(f"v_add_f32 v{ZS+sg}, v{ZS+sg}, v{TD+i}")
            for i in range(8): A(f"v_cvt_pk_bf16_f32 v{EP+i}, v{TD+2*i}, v{TD+2*i+1}")
            A("s_nop 1")
            c0 = "0" if st == 0 else f"v[{KVA+16*sg}:{KVA+16*sg+15}]"
            A(f"v_mfma_f32_32x32x16_bf16 v[{KVA+16*sg}:{KVA+16*sg+15}], v[{EP}:{EP+3}], v[{V[st]}:{V[st]+3}], {c0}")
            A(f"v_mfma_f32_32x32x16_bf16 v[{KVA+16*sg}:{KVA+16*sg+15}], v[{EP+4}:{EP+7}], v[{V[st]+4}:{V[st]+7}], v[{KVA+16*sg}:{KVA+16*sg+15}]")
            A("s_nop 7")
    xhalf(A, "v_add_f32", ZS, t, t+1)
    xhalf(A, "v_add_f32", ZS+1, t, t+1)
    A(f"s_lshl_b32 s{st0}, s{shead}, 5")
    A(f"s_lshl_b32 s{sc}, s{srb}, 1")
    A(f"s_add_u32 s{st0}, s{st0}, s{sc}")
    A(f"s_lshr_b32 s{sc}, s{swave}, 1")
    A(f"s_add_u32 s{st0}, s{st0}, s{sc}")
    A(f"s_mul_i32 s{st0}, s{st0}, {ST_SZ}")
    A(f"v_and_b32 v{va+2}, 31, v{lane}")
    A(f"v_lshlrev_b32 v{va+3}, 2, v{va+2}")
    A(f"v_lshlrev_b32 v{va+2}, 8, v{va+2}")
    A(f"v_lshl_add_u32 v{va+2}, v{hi}, 4, v{va+2}")
    A("s_nop 4")
    for sg in range(2):
        for gq in range(4):
            A(f"buffer_store_dwordx4 v[{KVA+16*sg+4*gq}:{KVA+16*sg+4*gq+3}], v{va+2}, s[{sS}:{sS+3}], s{st0} offen offset:{(32*sg+8*gq)*4}")
    A(f"v_cmp_gt_u32 vcc, 32, v{lane}")
    A("s_nop 1")
    A(f"v_cndmask_b32 v{ZS}, v{ZS+1}, v{ZS}, vcc")
    A(f"v_lshlrev_b32 v{va+3}, 2, v{lane}")
    A(f"s_add_u32 s{st0}, s{st0}, 8192")
    A(f"buffer_store_dword v{ZS}, v{va+3}, s[{sS}:{sS+3}], s{st0} offen")
    return vend, PH_OFF + 4*2048

def k2_o(A, swg, swave, lane, sbase, vbase, stamp=None):
    s = sbase
    sPH, sQ, sS, sO = s, s+4, s+8, s+12
    sP = s+16
    shead, srb, st0, sc, st1 = s+24, s+25, s+26, s+27, s+28
    A(f"s_load_dwordx2 s[{sP+4}:{sP+5}], s[0:1], 64")
    A(f"s_load_dwordx2 s[{sP+6}:{sP+7}], s[0:1], 96")
    A(f"s_lshr_b32 s{shead}, s{swg}, 3")
    A(f"s_and_b32 s{srb}, s{swg}, 7")
    A(f"s_mov_b32 s{sc}, {LOG2E}")
    A("s_waitcnt lgkmcnt(0)")
    make_srd(A, sPH, sP+4, 65536)
    make_srd(A, sQ, sP+6, MB4, WS_Q); make_srd(A, sS, sP+6, 32*NPART*ST_SZ, WS_ST); make_srd(A, sO, sP+6, MB4, WS_O)
    v = vbase
    va = v
    hi = v+6
    t = v+8
    QF = v+16
    WF = QF+16
    KF = WF+8
    ZF = KF+16
    P = ZF+16; EP = P+16; PHI = EP+16
    NUM = PHI+16; DEN = NUM+16
    LD = DEN+16
    AC = LD+64
    vend = AC+16
    A(f"v_lshrrev_b32 v{hi}, 5, v{lane}")
    A(f"v_lshlrev_b32 v{va}, 4, v{lane}")
    l1 = A.newlabel()
    A(f"s_cmp_ge_u32 s{swave}, 2")
    A(f"s_cbranch_scc1 {l1}")
    A(f"s_lshl_b32 m0, s{swave}, 10")
    A(f"s_lshl_b32 s{st0}, s{shead}, 11")
    A(f"s_lshl_b32 s{st1}, s{swave}, 10")
    A(f"s_add_u32 s{st0}, s{st0}, s{st1}")
    A(f"buffer_load_dwordx4 v{va}, s[{sPH}:{sPH+3}], s{st0} offen lds")
    A.label(l1)
    A(f"s_lshl_b32 s{st0}, s{srb}, 2")
    A(f"s_add_u32 s{st0}, s{st0}, s{swave}")
    A(f"s_lshl_b32 s{st0}, s{st0}, 17")
    A(f"s_lshl_b32 s{st1}, s{shead}, 6")
    A(f"s_add_u32 s{st0}, s{st0}, s{st1}")
    A(f"v_and_b32 v{va+1}, 31, v{lane}")
    A(f"v_lshlrev_b32 v{va+1}, 11, v{va+1}")
    A(f"v_add_u32 v{va+1}, s{st0}, v{va+1}")
    A(f"v_lshl_add_u32 v{va+2}, v{hi}, 4, v{va+1}")
    A(f"v_add_u32 v{va+3}, 0x10000, v{va+2}")
    for st in range(2):
        for k in range(2):
            A(f"buffer_load_dwordx4 v[{QF+8*st+4*k}:{QF+8*st+4*k+3}], v{va+2+st}, s[{sQ}:{sQ+3}], 0 offen offset:{32*k}")
    A(f"s_lshl_b32 s{st1}, s{swave}, 6")
    A(f"v_lshlrev_b32 v{va+4}, 4, v{hi}")
    A(f"v_add_u32 v{va+4}, s{st1}, v{va+4}")
    A(f"v_add_u32 v{va+5}, 8192, v{va+4}")
    A(f"v_and_b32 v{t}, 31, v{lane}")
    A(f"v_lshl_add_u32 v{va+4}, v{t}, 8, v{va+4}")
    A(f"s_mul_i32 s{st0}, s{shead}, {NPART*ST_SZ}")
    for j in range(16): A(f"v_mov_b32 v{AC+j}, 0")
    for b in range(NPART//4):
        for p in range(4):
            A(f"s_add_u32 s{st1}, s{st0}, {(4*b+p)*ST_SZ}")
            A(f"buffer_load_dwordx4 v[{LD+16*p}:{LD+16*p+3}], v{va+4}, s[{sS}:{sS+3}], s{st1} offen")
            A(f"buffer_load_dwordx4 v[{LD+16*p+4}:{LD+16*p+7}], v{va+4}, s[{sS}:{sS+3}], s{st1} offen offset:32")
            A(f"buffer_load_dwordx4 v[{LD+16*p+8}:{LD+16*p+11}], v{va+5}, s[{sS}:{sS+3}], s{st1} offen")
            A(f"buffer_load_dwordx4 v[{LD+16*p+12}:{LD+16*p+15}], v{va+5}, s[{sS}:{sS+3}], s{st1} offen offset:32")
        for p in range(4):
            A(f"s_waitcnt vmcnt({4*(3-p)})")
            for j in range(16): A(f"v_add_f32 v{AC+j}, v{AC+j}, v{LD+16*p+j}")
    if stamp: stamp()
    for i in range(8): A(f"v_cvt_pk_bf16_f32 v{LD+i}, v{AC+2*i}, v{AC+2*i+1}")
    A(f"s_lshl_b32 s{st1}, s{swave}, 10")
    A(f"v_add_u32 v{t}, s{st1}, v{va}")
    A(f"ds_write_b128 v{t}, v[{LD}:{LD+3}] offset:2048")
    A(f"ds_write_b128 v{t}, v[{LD+4}:{LD+7}] offset:{2048+4096}")
    A("s_waitcnt vmcnt(0) lgkmcnt(0)")
    A("s_barrier")
    if stamp: stamp()
    for k in range(4):
        A(f"ds_read_b128 v[{KF+4*k}:{KF+4*k+3}], v{va} offset:{2048+1024*k}")
        A(f"ds_read_b128 v[{ZF+4*k}:{ZF+4*k+3}], v{va} offset:{2048+4096+1024*k}")
    wphi_addr(A, va+4, lane, t, True)
    wphi_reads(A, WF, va+4, 0, True)
    A(f"v_lshl_add_u32 v{va+2}, v{hi}, 3, v{va+1}")
    A(f"v_add_u32 v{va+3}, 0x10000, v{va+2}")
    A(f"s_mov_b32 s{st1}, 0x358637bd")
    A("s_waitcnt lgkmcnt(0)")
    for st in range(2):
        featmap(A, QF+8*st, QF+8*st+4, WF, WF+4, P, EP, t, PHI, sc)
        A("s_nop 1")
        for k in range(4):
            c0 = "0" if k == 0 else f"v[{NUM}:{NUM+15}]"
            A(f"v_mfma_f32_32x32x16_bf16 v[{NUM}:{NUM+15}], v[{KF+4*k}:{KF+4*k+3}], v[{PHI+4*k}:{PHI+4*k+3}], {c0}")
        for k in range(4):
            c0 = "0" if k == 0 else f"v[{DEN}:{DEN+15}]"
            A(f"v_mfma_f32_32x32x16_bf16 v[{DEN}:{DEN+15}], v[{ZF+4*k}:{ZF+4*k+3}], v[{PHI+4*k}:{PHI+4*k+3}], {c0}")
        A("s_nop 7"); A("s_nop 4")
        A(f"v_mov_b32 v{t+1}, s{st1}")
        round2(A, DEN, t+1, t)
        A(f"v_add_f32 v{DEN}, v{DEN}, v{t+1}")
        round2(A, DEN, t+1, t)
        A(f"v_rcp_f32 v{DEN}, v{DEN}")
        for i in range(8): round2(A, NUM+2*i, NUM+2*i+1, t)
        for i in range(16): A(f"v_mul_f32 v{NUM+i}, v{NUM+i}, v{DEN}")
        for gq in range(4):
            o = LD + 8*st + 2*gq
            A(f"v_cvt_pk_bf16_f32 v{o}, v{NUM+4*gq}, v{NUM+4*gq+1}")
            A(f"v_cvt_pk_bf16_f32 v{o+1}, v{NUM+4*gq+2}, v{NUM+4*gq+3}")
            A(f"buffer_store_dwordx2 v[{o}:{o+1}], v{va+2+st}, s[{sO}:{sO+3}], 0 offen offset:{16*gq}")
    return vend, 2048+8192

def k3_gemm(A, swave, lane, sbase, vbase, NSTAGE=4, stamp=None):
    s = sbase
    sX, sW, sO = s, s+4, s+8
    sP = s+12
    srb, snb, sxo, swo, st0 = s+20, s+21, s+22, s+23, s+24
    A(f"s_load_dwordx2 s[{sP}:{sP+1}], s[0:1], 72")
    A(f"s_load_dwordx2 s[{sP+2}:{sP+3}], s[0:1], 80")
    A(f"s_load_dwordx2 s[{sP+6}:{sP+7}], s[0:1], 96")
    wg_map(A, srb, snb, st0)
    A(f"s_lshl_b32 s{sxo}, s{srb}, 18")
    A(f"s_lshl_b32 s{swo}, s{snb}, 7")
    A("s_waitcnt lgkmcnt(0)")
    make_srd(A, sX, sP+6, MB4, WS_O); make_srd(A, sW, sP, 2<<20); make_srd(A, sO, sP+2, 2*MB4)
    g = gemm_core(A, 1, 2048, sX, sW, sxo, swo, swave, lane, s+28, vbase, NSTAGE, stamp=stamp)
    e = g.vfree
    va = g.vtmp
    A(f"s_lshr_b32 s{st0}, s{swave}, 1")
    A(f"s_lshl_b32 s{st0}, s{st0}, 18")
    A(f"s_lshl_b32 s{sxo}, s{srb}, 19")
    A(f"s_add_u32 s{st0}, s{st0}, s{sxo}")
    A(f"s_add_u32 s{st0}, s{st0}, s{swo}")
    A(f"s_and_b32 s{sxo}, s{swave}, 1")
    A(f"s_lshl_b32 s{sxo}, s{sxo}, 6")
    A(f"s_add_u32 s{st0}, s{st0}, s{sxo}")
    A(f"s_add_u32 s{st0}, s{st0}, 2048")
    A(f"v_and_b32 v{va}, 31, v{lane}")
    A(f"v_lshlrev_b32 v{va}, 12, v{va}")
    A(f"v_lshrrev_b32 v{va+1}, 5, v{lane}")
    A(f"v_lshl_add_u32 v{va}, v{va+1}, 3, v{va}")
    A(f"v_add_u32 v{va}, s{st0}, v{va}")
    A(f"v_add_u32 v{va+1}, 0x20000, v{va}")
    A("s_nop 7"); A("s_nop 4")
    for st in range(2):
        a = g.acc[0][st]
        for gq in range(4):
            o = e + 8*st + 2*gq
            A(f"v_cvt_pk_bf16_f32 v{o}, v{a+4*gq}, v{a+4*gq+1}")
            A(f"v_cvt_pk_bf16_f32 v{o+1}, v{a+4*gq+2}, v{a+4*gq+3}")
            A(f"buffer_store_dwordx2 v[{o}:{o+1}], v{va+st}, s[{sO}:{sO+3}], 0 offen offset:{16*gq}")
    return g.vend, g.lds
```

```python
from asmlib import *
from parta import *
from gemm3 import *
from parta2 import *
from partb import xhalf, wg_map, wphi_addr, wphi_reads, LOG2E, ST_SZ

NPART = 16

def featmap(A, b0, b1, w0, w1, P, EP, t, out, sc):
    A(f"v_mfma_f32_32x32x16_bf16 v[{P}:{P+15}], v[{w0}:{w0+3}], v[{b0}:{b0+3}], 0")
    A(f"v_mfma_f32_32x32x16_bf16 v[{P}:{P+15}], v[{w1}:{w1+3}], v[{b1}:{b1+3}], v[{P}:{P+15}]")
    A("s_nop 7"); A("s_nop 4")
    for i in range(8): round2(A, P+2*i, P+2*i+1, t)
    mx, mn, sp, sm = t+1, t+2, t+3, t+4
    A(f"v_max3_f32 v{mx}, v{P}, v{P+1}, v{P+2}")
    A(f"v_min3_f32 v{mn}, v{P}, v{P+1}, v{P+2}")
    for i in range(3, 15, 2):
        A(f"v_max3_f32 v{mx}, v{mx}, v{P+i}, v{P+i+1}")
        A(f"v_min3_f32 v{mn}, v{mn}, v{P+i}, v{P+i+1}")
    A(f"v_max_f32 v{mx}, v{mx}, v{P+15}")
    A(f"v_min_f32 v{mn}, v{mn}, v{P+15}")
    xhalf(A, "v_max_f32", mx, t+5, t+6)
    xhalf(A, "v_min_f32", mn, t+5, t+6)
    A(f"v_mul_f32 v{mx}, s{sc}, v{mx}")
    A(f"v_mul_f32 v{mn}, s{sc}, v{mn}")
    for i in range(16):
        A(f"v_fma_f32 v{EP+i}, v{P+i}, s{sc}, -v{mx}")
        A(f"v_fma_f32 v{P+i}, -v{P+i}, s{sc}, v{mn}")
        A(f"v_exp_f32 v{EP+i}, v{EP+i}")
        A(f"v_exp_f32 v{P+i}, v{P+i}")
    A("s_nop 0")
    A(f"v_add_f32 v{sp}, v{EP}, v{EP+1}")
    A(f"v_add_f32 v{sm}, v{P}, v{P+1}")
    for i in range(2, 16):
        A(f"v_add_f32 v{sp}, v{sp}, v{EP+i}")
        A(f"v_add_f32 v{sm}, v{sm}, v{P+i}")
    xhalf(A, "v_add_f32", sp, t+5, t+6)
    xhalf(A, "v_add_f32", sm, t+5, t+6)
    A(f"v_rcp_f32 v{sp}, v{sp}")
    A(f"v_rcp_f32 v{sm}, v{sm}")
    A("s_nop 0")
    for i in range(16):
        A(f"v_mul_f32 v{EP+i}, v{EP+i}, v{sp}")
        A(f"v_mul_f32 v{P+i}, v{P+i}, v{sm}")
    for i in range(8):
        A(f"v_cvt_pk_bf16_f32 v{out+i}, v{EP+2*i}, v{EP+2*i+1}")
        A(f"v_cvt_pk_bf16_f32 v{out+8+i}, v{P+2*i}, v{P+2*i+1}")

def k1_gemm(A, swave, lane, sbase, vbase, stamp=None, with_apre=True):
    s = sbase
    sX, sW, sPH, sQ, sS = s, s+4, s+8, s+12, s+16
    sP = s+20
    srb, shp, sxo, swo, st0, shead, sc, st1 = s+28, s+29, s+30, s+31, s+32, s+33, s+34, s+35
    A(f"s_load_dwordx2 s[{sP}:{sP+1}], s[0:1], 48")
    A(f"s_load_dwordx2 s[{sP+2}:{sP+3}], s[0:1], 56")
    A(f"s_load_dwordx2 s[{sP+4}:{sP+5}], s[0:1], 64")
    A(f"s_load_dwordx2 s[{sP+6}:{sP+7}], s[0:1], 96")
    wg_map(A, srb, shp, st0)
    A(f"s_lshl_b32 s{sxo}, s{srb}, 18")
    A(f"s_lshl_b32 s{swo}, s{shp}, 7")
    A(f"s_and_b32 s{st0}, s{swave}, 1")
    A(f"s_lshl_b32 s{shead}, s{shp}, 1")
    A(f"s_add_u32 s{shead}, s{shead}, s{st0}")
    A(f"s_mov_b32 s{sc}, {LOG2E}")
    A("s_waitcnt lgkmcnt(0)")
    make_srd(A, sX, sP, MB4); make_srd(A, sW, sP+2, 6<<20); make_srd(A, sPH, sP+4, 65536)
    make_srd(A, sQ, sP+6, MB4, WS_Q); make_srd(A, sS, sP+6, 32*NPART*ST_SZ, WS_ST)
    PH_OFF = 3*(16384+3*8192)
    vt = vbase
    A(f"v_lshlrev_b32 v{vt}, 4, v{lane}")
    l1 = A.newlabel()
    A(f"s_cmp_ge_u32 s{swave}, 4")
    A(f"s_cbranch_scc1 {l1}")
    A(f"s_lshl_b32 s{st0}, s{swave}, 10")
    A(f"s_add_u32 m0, s{st0}, {PH_OFF}")
    A(f"s_lshl_b32 s{st1}, s{shp}, 12")
    A(f"s_add_u32 s{st0}, s{st0}, s{st1}")
    A(f"buffer_load_dwordx4 v{vt}, s[{sPH}:{sPH+3}], s{st0} offen lds")
    A.label(l1)
    fl = None; vend_f = 0
    if with_apre:
        sJ = s+46
        A(f"s_lshl_b32 s{sJ}, s2, 2")
        A(f"s_add_u32 s{sJ}, s{sJ}, s{swave}")
        Pp, Bb, vend_f, _ = apre_rec(sJ, s+48, 104, lane, 4)
        fl = (Pp, Bb)
    g = gemm_core3(A, 3, 6144, sX, sW, sxo, swo, swave, lane, s+36, vbase, "sym8", 3, vtile_swapped=(2,), stamp=stamp, fillers=fl, fill_waves=4)
    assert g.vend <= 104 and g.send <= s+46
    e = (g.vend+3)//4*4
    P, EP, PHI, TD = e, e+16, e+32, e+48
    f = g.vfree
    ID = f
    WF = f+8
    t = f+16
    ZS = f+24
    va = f+26
    vend = max(e+64, vend_f)
    Q, K, V = g.acc[0][0], g.acc[1][0], g.acc[2][0]
    KVA = [Q, PHI]
    hi = va+1
    A(f"v_lshrrev_b32 v{hi}, 5, v{lane}")
    wphi_addr(A, va, lane, t, False)
    A(f"s_and_b32 s{st0}, s{swave}, 1")
    A(f"s_lshl_b32 s{st0}, s{st0}, 11")
    A(f"s_add_u32 s{st0}, s{st0}, {PH_OFF}")
    A(f"v_add_u32 v{va}, s{st0}, v{va}")
    wphi_reads(A, WF, va, 0, False)
    A(f"v_and_b32 v{t}, 31, v{lane}")
    A(f"v_lshlrev_b32 v{t+1}, 2, v{hi}")
    A(f"v_sub_u32 v{t}, v{t}, v{t+1}")
    A(f"v_mov_b32 v{t+2}, 0x3f80")
    A(f"v_mov_b32 v{t+3}, 0x3f800000")
    for k in range(2):
        for i in range(4):
            j = 2*i
            f0 = 16*k + 8*(j//4) + j%4
            A(f"v_cmp_eq_u32 vcc, {f0}, v{t}")
            A(f"v_cmp_eq_u32 s[{sP}:{sP+1}], {f0+1}, v{t}")
            A("s_nop 0")
            A(f"v_cndmask_b32 v{ID+4*k+i}, 0, v{t+2}, vcc")
            A(f"v_cndmask_b32 v{t+1}, 0, v{t+3}, s[{sP}:{sP+1}]")
            A(f"v_or_b32 v{ID+4*k+i}, v{ID+4*k+i}, v{t+1}")
    A(f"s_lshr_b32 s{st0}, s{swave}, 1")
    A(f"s_lshl_b32 s{st0}, s{st0}, 16")
    A(f"s_add_u32 s{st0}, s{st0}, s{sxo}")
    A(f"v_and_b32 v{va+2}, 31, v{lane}")
    A(f"v_lshlrev_b32 v{va+2}, 11, v{va+2}")
    A(f"v_lshl_add_u32 v{va+2}, v{hi}, 3, v{va+2}")
    A(f"v_add_u32 v{va+2}, s{st0}, v{va+2}")
    A(f"s_lshl_b32 s{st0}, s{shead}, 6")
    A(f"v_add_u32 v{va+2}, s{st0}, v{va+2}")
    for gq in range(4):
        A(f"v_cvt_pk_bf16_f32 v{TD+2*gq}, v{Q+4*gq}, v{Q+4*gq+1}")
        A(f"v_cvt_pk_bf16_f32 v{TD+2*gq+1}, v{Q+4*gq+2}, v{Q+4*gq+3}")
        A(f"buffer_store_dwordx2 v[{TD+2*gq}:{TD+2*gq+1}], v{va+2}, s[{sQ}:{sQ+3}], 0 offen offset:{16*gq}")
    for i in range(8):
        A(f"v_cvt_pk_bf16_f32 v{K+i}, v{K+2*i}, v{K+2*i+1}")
        A(f"v_cvt_pk_bf16_f32 v{V+i}, v{V+2*i}, v{V+2*i+1}")
    A("s_waitcnt lgkmcnt(0)")
    if stamp: stamp()
    featmap(A, K, K+4, WF, WF+4, P, EP, t, PHI, sc)
    if stamp: stamp()
    A("s_nop 1")
    for sg, D in ((0, TD), (1, P)):
        A(f"v_mfma_f32_32x32x16_bf16 v[{D}:{D+15}], v[{PHI+8*sg}:{PHI+8*sg+3}], v[{ID}:{ID+3}], 0")
        A(f"v_mfma_f32_32x32x16_bf16 v[{D}:{D+15}], v[{PHI+8*sg+4}:{PHI+8*sg+7}], v[{ID+4}:{ID+7}], v[{D}:{D+15}]")
    A("s_nop 7"); A("s_nop 4")
    for sg, D in ((0, TD), (1, P)):
        for i in range(8): A(f"v_cvt_pk_bf16_f32 v{EP+8*sg+i}, v{D+2*i}, v{D+2*i+1}")
    A("s_nop 1")
    KVA = [Q, PHI]
    for sg in range(2):
        a = KVA[sg]
        A(f"v_mfma_f32_32x32x16_bf16 v[{a}:{a+15}], v[{EP+8*sg}:{EP+8*sg+3}], v[{V}:{V+3}], 0")
        A(f"v_mfma_f32_32x32x16_bf16 v[{a}:{a+15}], v[{EP+8*sg+4}:{EP+8*sg+7}], v[{V+4}:{V+7}], v[{a}:{a+15}]")
    for sg, D in ((0, TD), (1, P)):
        A(f"v_add_f32 v{ZS+sg}, v{D}, v{D+1}")
        for i in range(2, 16): A(f"v_add_f32 v{ZS+sg}, v{ZS+sg}, v{D+i}")
    xhalf(A, "v_add_f32", ZS, t, t+1)
    xhalf(A, "v_add_f32", ZS+1, t, t+1)
    A(f"v_cmp_gt_u32 vcc, 32, v{lane}")
    A("s_nop 1")
    A(f"v_cndmask_b32 v{ZS}, v{ZS+1}, v{ZS}, vcc")
    if stamp: stamp()
    A("s_barrier")
    A(f"s_mul_i32 s{st0}, s{swave}, {9*1024}")
    A(f"v_lshlrev_b32 v{va+3}, 4, v{lane}")
    A(f"v_add_u32 v{va+4}, s{st0}, v{va+3}")
    for sg in range(2):
        for gq in range(4):
            a = KVA[sg] + 4*gq
            A(f"ds_write_b128 v{va+4}, v[{a}:{a+3}] offset:{(sg*4+gq)*1024}")
    A(f"ds_write_b32 v{va+4}, v{ZS} offset:{8*1024}")
    A("s_waitcnt lgkmcnt(0)")
    A("s_barrier")
    A(f"s_and_b32 s{st0}, s{swave}, 1")
    A(f"s_mul_i32 s{st0}, s{st0}, {9*1024}")
    A(f"s_lshr_b32 s{st1}, s{swave}, 1")
    A(f"s_lshl_b32 s{sc}, s{st1}, 11")
    A(f"s_add_u32 s{st0}, s{st0}, s{sc}")
    A(f"v_add_u32 v{va+4}, s{st0}, v{va+3}")
    R = P
    for src in range(4):
        for gg in range(2):
            r = R + (src*2+gg)*4
            A(f"ds_read_b128 v[{r}:{r+3}], v{va+4} offset:{src*2*9*1024 + gg*1024}")
    A(f"s_and_b32 s{st0}, s{swave}, 1")
    A(f"s_mul_i32 s{st0}, s{st0}, {9*1024}")
    A(f"v_add_u32 v{va+5}, s{st0}, v{va+3}")
    for src in range(4):
        A(f"ds_read_b32 v{t+src}, v{va+5} offset:{src*2*9*1024 + 8*1024}")
    A(f"s_lshl_b32 s{st0}, s{shead}, 4")
    A(f"s_add_u32 s{st0}, s{st0}, s{srb}")
    A(f"s_mul_i32 s{st0}, s{st0}, {ST_SZ}")
    A(f"s_lshl_b32 s{sc}, s{st1}, 11")
    A(f"s_add_u32 s{sc}, s{sc}, s{st0}")
    A("s_waitcnt lgkmcnt(0)")
    for gg in range(2):
        for j in range(4):
            r = R + gg*4 + j
            A(f"v_add_f32 v{r}, v{r}, v{r+8}")
            A(f"v_add_f32 v{r+16}, v{r+16}, v{r+24}")
            A(f"v_add_f32 v{r}, v{r}, v{r+16}")
        A(f"buffer_store_dwordx4 v[{R+gg*4}:{R+gg*4+3}], v{va+3}, s[{sS}:{sS+3}], s{sc} offen offset:{1024*gg}")
    l2 = A.newlabel()
    A(f"s_cmp_lg_u32 s{st1}, 0")
    A(f"s_cbranch_scc1 {l2}")
    A(f"v_add_f32 v{t}, v{t}, v{t+1}")
    A(f"v_add_f32 v{t+2}, v{t+2}, v{t+3}")
    A(f"v_add_f32 v{t}, v{t}, v{t+2}")
    A(f"v_lshlrev_b32 v{va+3}, 2, v{lane}")
    A(f"s_add_u32 s{st0}, s{st0}, 8192")
    A(f"buffer_store_dword v{t}, v{va+3}, s[{sS}:{sS+3}], s{st0} offen")
    A.label(l2)
    return vend, PH_OFF + 4096

def k2_o(A, swg, swave, lane, sbase, vbase, ldsbase, stamp=None):
    s = sbase
    sPH, sQ, sS, sO = s, s+4, s+8, s+12
    sP = s+16
    shead, srb, st0, sc, st1 = s+24, s+25, s+26, s+27, s+28
    A(f"s_load_dwordx2 s[{sP+4}:{sP+5}], s[0:1], 64")
    A(f"s_load_dwordx2 s[{sP+6}:{sP+7}], s[0:1], 96")
    A(f"s_and_b32 s{shead}, s{swg}, 7")
    A(f"s_lshl_b32 s{shead}, s{shead}, 2")
    A(f"s_bfe_u32 s{st0}, s{swg}, 0x20003")
    A(f"s_add_u32 s{shead}, s{shead}, s{st0}")
    A(f"s_lshr_b32 s{srb}, s{swg}, 5")
    A(f"s_mov_b32 s{sc}, {LOG2E}")
    A("s_waitcnt lgkmcnt(0)")
    make_srd(A, sPH, sP+4, 65536)
    make_srd(A, sQ, sP+6, MB4, WS_Q); make_srd(A, sS, sP+6, 32*NPART*ST_SZ, WS_ST); make_srd(A, sO, sP+6, MB4, WS_O)
    v = vbase
    va = v
    hi = v+6
    vl = v+7
    t = v+8
    QF = v+16
    WF = QF+16
    KF = WF+8
    ZF = KF+16
    P = ZF+16; EP = P+16; PHI = EP+16
    NUM = PHI+16; DEN = NUM+16
    LD = P
    ZL = KF
    vend = LD+128
    A(f"v_lshrrev_b32 v{hi}, 5, v{lane}")
    A(f"v_lshlrev_b32 v{va}, 4, v{lane}")
    A(f"v_add_u32 v{vl}, {ldsbase}, v{va}")
    A(f"s_mul_i32 s{st0}, s{shead}, {NPART*ST_SZ}")
    A(f"s_lshl_b32 s{st1}, s{swave}, 11")
    A(f"s_add_u32 s{st0}, s{st0}, s{st1}")
    for p in range(NPART):
        A(f"s_add_u32 s{st1}, s{st0}, {p*ST_SZ}")
        A(f"buffer_load_dwordx4 v[{LD+8*p}:{LD+8*p+3}], v{va}, s[{sS}:{sS+3}], s{st1} offen")
        A(f"buffer_load_dwordx4 v[{LD+8*p+4}:{LD+8*p+7}], v{va}, s[{sS}:{sS+3}], s{st1} offen offset:1024")
    A(f"s_lshl_b32 s{st0}, s{srb}, 2")
    A(f"s_add_u32 s{st0}, s{st0}, s{swave}")
    A(f"s_lshl_b32 s{st0}, s{st0}, 17")
    A(f"s_lshl_b32 s{st1}, s{shead}, 6")
    A(f"s_add_u32 s{st0}, s{st0}, s{st1}")
    A(f"v_and_b32 v{va+1}, 31, v{lane}")
    A(f"v_lshlrev_b32 v{va+1}, 11, v{va+1}")
    A(f"v_add_u32 v{va+1}, s{st0}, v{va+1}")
    A(f"v_lshl_add_u32 v{va+2}, v{hi}, 4, v{va+1}")
    A(f"v_add_u32 v{va+3}, 0x10000, v{va+2}")
    for st in range(2):
        for k in range(2):
            A(f"buffer_load_dwordx4 v[{QF+8*st+4*k}:{QF+8*st+4*k+3}], v{va+2+st}, s[{sQ}:{sQ+3}], 0 offen offset:{32*k}")
    l1 = A.newlabel(); l2 = A.newlabel()
    A(f"s_cmp_ge_u32 s{swave}, 2")
    A(f"s_cbranch_scc1 {l1}")
    A(f"s_lshl_b32 s{st1}, s{swave}, 10")
    A(f"s_add_u32 m0, s{st1}, {ldsbase}")
    A(f"s_lshl_b32 s{st0}, s{shead}, 11")
    A(f"s_add_u32 s{st0}, s{st0}, s{st1}")
    A(f"buffer_load_dwordx4 v{va}, s[{sPH}:{sPH+3}], s{st0} offen lds")
    A.label(l1)
    A(f"s_cmp_lg_u32 s{swave}, 3")
    A(f"s_cbranch_scc1 {l2}")
    A(f"v_lshrrev_b32 v{t}, 4, v{lane}")
    A(f"s_mov_b32 s{st1}, {ST_SZ}")
    A(f"v_mul_lo_u32 v{t}, v{t}, s{st1}")
    A(f"v_and_b32 v{t+1}, 15, v{lane}")
    A(f"v_lshl_add_u32 v{t}, v{t+1}, 4, v{t}")
    A(f"s_mul_i32 s{st0}, s{shead}, {NPART*ST_SZ}")
    for b in range(4):
        A(f"s_add_u32 s{st1}, s{st0}, {4*b*ST_SZ + 8192}")
        A(f"buffer_load_dwordx4 v[{ZL+4*b}:{ZL+4*b+3}], v{t}, s[{sS}:{sS+3}], s{st1} offen")
    A.label(l2)
    for p in range(1, NPART):
        A(f"s_waitcnt vmcnt({2*(NPART-1-p)+4})")
        for j in range(8): A(f"v_add_f32 v{LD+j}, v{LD+j}, v{LD+8*p+j}")
    if stamp: stamp()
    for i in range(4): A(f"v_cvt_pk_bf16_f32 v{t+i}, v{LD+2*i}, v{LD+2*i+1}")
    A(f"s_lshl_b32 s{st1}, s{swave}, 10")
    A(f"v_add_u32 v{t+4}, s{st1}, v{vl}")
    A(f"ds_write_b128 v{t+4}, v[{t}:{t+3}] offset:2048")
    A("s_waitcnt vmcnt(0)")
    l3 = A.newlabel()
    A(f"s_cmp_lg_u32 s{swave}, 3")
    A(f"s_cbranch_scc1 {l3}")
    for j in range(4):
        A(f"v_add_f32 v{ZL+j}, v{ZL+j}, v{ZL+4+j}")
        A(f"v_add_f32 v{ZL+8+j}, v{ZL+8+j}, v{ZL+12+j}")
        A(f"v_add_f32 v{ZL+j}, v{ZL+j}, v{ZL+8+j}")
    for j in range(4):
        xhalf(A, "v_add_f32", ZL+j, t+5, t+6)
        A(f"v_mov_b32 v{t+5}, v{ZL+j}")
        A(f"v_mov_b32 v{t+6}, v{ZL+j}")
        A("s_nop 1")
        A(f"v_permlane16_swap_b32 v{t+5}, v{t+6}")
        A("s_nop 1")
        A(f"v_add_f32 v{ZL+j}, v{t+5}, v{t+6}")
    A(f"v_cvt_pk_bf16_f32 v{t}, v{ZL}, v{ZL+1}")
    A(f"v_cvt_pk_bf16_f32 v{t+1}, v{ZL+2}, v{ZL+3}")
    A(f"v_and_b32 v{t+2}, 15, v{lane}")
    A(f"v_lshlrev_b32 v{t+2}, 3, v{t+2}")
    A(f"v_add_u32 v{t+2}, {ldsbase+6144}, v{t+2}")
    A(f"ds_write_b64 v{t+2}, v[{t}:{t+1}]")
    A.label(l3)
    A("s_waitcnt lgkmcnt(0)")
    A("s_barrier")
    if stamp: stamp()
    A(f"v_lshlrev_b32 v{t+2}, 3, v{hi}")
    A(f"v_add_u32 v{t+2}, {ldsbase+6144}, v{t+2}")
    for k in range(4):
        A(f"ds_read_b128 v[{KF+4*k}:{KF+4*k+3}], v{vl} offset:{2048+1024*k}")
        A(f"ds_read_b64 v[{ZF+4*k}:{ZF+4*k+1}], v{t+2} offset:{32*k}")
        A(f"ds_read_b64 v[{ZF+4*k+2}:{ZF+4*k+3}], v{t+2} offset:{32*k+16}")
    wphi_addr(A, va+4, lane, t, True)
    A(f"v_add_u32 v{va+4}, {ldsbase}, v{va+4}")
    wphi_reads(A, WF, va+4, 0, True)
    A(f"v_lshl_add_u32 v{va+2}, v{hi}, 3, v{va+1}")
    A(f"v_add_u32 v{va+3}, 0x10000, v{va+2}")
    A(f"s_mov_b32 s{st1}, 0x358637bd")
    A("s_waitcnt lgkmcnt(0)")
    OB = DEN+16
    for st in range(2):
        featmap(A, QF+8*st, QF+8*st+4, WF, WF+4, P, EP, t, PHI, sc)
        A("s_nop 1")
        for k in range(4):
            c0 = "0" if k == 0 else f"v[{NUM}:{NUM+15}]"
            A(f"v_mfma_f32_32x32x16_bf16 v[{NUM}:{NUM+15}], v[{KF+4*k}:{KF+4*k+3}], v[{PHI+4*k}:{PHI+4*k+3}], {c0}")
        for k in range(4):
            c0 = "0" if k == 0 else f"v[{DEN}:{DEN+15}]"
            A(f"v_mfma_f32_32x32x16_bf16 v[{DEN}:{DEN+15}], v[{ZF+4*k}:{ZF+4*k+3}], v[{PHI+4*k}:{PHI+4*k+3}], {c0}")
        A("s_nop 7"); A("s_nop 4")
        A(f"v_mov_b32 v{t+1}, s{st1}")
        round2(A, DEN, t+1, t)
        A(f"v_add_f32 v{DEN}, v{DEN}, v{t+1}")
        round2(A, DEN, t+1, t)
        A(f"v_rcp_f32 v{DEN}, v{DEN}")
        for i in range(8): round2(A, NUM+2*i, NUM+2*i+1, t)
        for i in range(16): A(f"v_mul_f32 v{NUM+i}, v{NUM+i}, v{DEN}")
        for gq in range(4):
            o = OB + 8*st + 2*gq
            A(f"v_cvt_pk_bf16_f32 v{o}, v{NUM+4*gq}, v{NUM+4*gq+1}")
            A(f"v_cvt_pk_bf16_f32 v{o+1}, v{NUM+4*gq+2}, v{NUM+4*gq+3}")
            A(f"buffer_store_dwordx2 v[{o}:{o+1}], v{va+2+st}, s[{sO}:{sO+3}], 0 offen offset:{16*gq}")
    return vend, 6144+128

def k3_gemm(A, swave, lane, sbase, vbase, NSTAGE=4, stamp=None, with_apost=True):
    s = sbase
    sX, sW, sO = s, s+4, s+8
    sP = s+12
    srb, snb, sxo, swo, st0 = s+20, s+21, s+22, s+23, s+24
    A(f"s_load_dwordx2 s[{sP}:{sP+1}], s[0:1], 72")
    A(f"s_load_dwordx2 s[{sP+2}:{sP+3}], s[0:1], 80")
    A(f"s_load_dwordx2 s[{sP+6}:{sP+7}], s[0:1], 96")
    wg_map(A, srb, snb, st0)
    A(f"s_lshl_b32 s{sxo}, s{srb}, 18")
    A(f"s_lshl_b32 s{swo}, s{snb}, 7")
    A("s_waitcnt lgkmcnt(0)")
    make_srd(A, sX, sP+6, MB4, WS_O); make_srd(A, sW, sP, 2<<20); make_srd(A, sO, sP+2, 2*MB4)
    fl = None; vend_f = 0
    if with_apost:
        sJ = s+40
        A(f"s_lshl_b32 s{sJ}, s2, 2")
        A(f"s_add_u32 s{sJ}, s{sJ}, s{swave}")
        Pp, Bb, vend_f, _ = apost_rec(sJ, s+44, 104, lane)
        fl = (Pp, Bb)
    g = gemm_core3(A, 1, 2048, sX, sW, sxo, swo, swave, lane, s+28, vbase, "spec", NSTAGE, stamp=stamp, fillers=fl, fill_start=4, per_mfma=4)
    assert g.vend+16 <= 104 and g.send <= s+40
    e = g.vend
    va = g.vtmp
    A(f"s_lshr_b32 s{st0}, s{swave}, 1")
    A(f"s_lshl_b32 s{st0}, s{st0}, 18")
    A(f"s_lshl_b32 s{sxo}, s{srb}, 19")
    A(f"s_add_u32 s{st0}, s{st0}, s{sxo}")
    A(f"s_add_u32 s{st0}, s{st0}, s{swo}")
    A(f"s_and_b32 s{sxo}, s{swave}, 1")
    A(f"s_lshl_b32 s{sxo}, s{sxo}, 6")
    A(f"s_add_u32 s{st0}, s{st0}, s{sxo}")
    A(f"s_add_u32 s{st0}, s{st0}, 2048")
    A(f"v_and_b32 v{va}, 31, v{lane}")
    A(f"v_lshlrev_b32 v{va}, 12, v{va}")
    A(f"v_lshrrev_b32 v{va+1}, 5, v{lane}")
    A(f"v_lshl_add_u32 v{va}, v{va+1}, 3, v{va}")
    A(f"v_add_u32 v{va}, s{st0}, v{va}")
    A(f"v_add_u32 v{va+1}, 0x20000, v{va}")
    A("s_nop 7"); A("s_nop 4")
    for st in range(2):
        a = g.acc[0][st]
        for gq in range(4):
            o = e + 8*st + 2*gq
            A(f"v_cvt_pk_bf16_f32 v{o}, v{a+4*gq}, v{a+4*gq+1}")
            A(f"v_cvt_pk_bf16_f32 v{o+1}, v{a+4*gq+2}, v{a+4*gq+3}")
            A(f"buffer_store_dwordx2 v[{o}:{o+1}], v{va+st}, s[{sO}:{sO+3}], 0 offen offset:{16*gq}")
    return max(g.vend+16, vend_f), g.lds, g.lend
```

```python
from asmlib import *
class Stamper:
    def __init__(self, A, kidx, sjob):
        self.A = A; self.k = kidx; self.n = 0; self.sjob = sjob
    def __call__(self, wait=True):
        A = self.A
        if self.n == 0: A("s_memrealtime s[92:93]")
        A(f"s_memtime s[{86+2*self.n}:{87+2*self.n}]")
        if wait: A("s_waitcnt lgkmcnt(0)")
        self.n += 1
    def finish(self, v0=250):
        A = self.A
        A("s_waitcnt vmcnt(0)")
        self()
        A("s_memrealtime s[94:95]")
        A("s_load_dwordx2 s[100:101], s[0:1], 96")
        A("s_waitcnt lgkmcnt(0)")
        make_srd(A, 96, 100, 1<<20, (32<<20) + (self.k<<20))
        A(f"v_mov_b32 v{v0+1}, s{self.sjob}")
        A(f"v_lshlrev_b32 v{v0+1}, 5, v{v0+1}")
        for j in range(self.n):
            A(f"v_mov_b32 v{v0}, s{86+2*j}")
            A(f"buffer_store_dword v{v0}, v{v0+1}, s[96:99], 0 offen offset:{4*j}")
        for j in (6, 7):
            A(f"v_mov_b32 v{v0}, s{80+2*j}")
            A(f"buffer_store_dword v{v0}, v{v0+1}, s[96:99], 0 offen offset:{4*j}")
```

```python
import sys
from asmlib import *
from parta import *
from partb3 import *
from stamps import *
ST = len(sys.argv) > 1
A = Asm()
descs = []; launches = []
def prologue(ngrid, nw=4):
    A(f"s_cmp_ge_u32 s2, {ngrid}")
    A("s_cbranch_scc1 9f")
    A("v_lshrrev_b32 v1, 6, v0")
    A("s_nop 0")
    A("v_readfirstlane_b32 s3, v1")
    A("v_and_b32 v0, 63, v0")
    A("s_nop 3")
    A(f"s_mul_i32 s4, s2, {nw}")
    A("s_add_u32 s4, s4, s3")
def fin(name, ve, grid, lds, nw=4, sg=102):
    A.raw("9:"); A("s_endpgm"); descs.append(kernel_desc(name, ve, sg)); launches.append(f"; @launch kernel={name} grid=({grid},1,1) block=({64*nw},1,1) lds={lds}")
def mk(k):
    if not ST: return None
    S = Stamper(A, k, 4); S(); return S
kernel_begin(A, "k1_kernel"); prologue(256, 8)
S = mk(0)
ve, lds = k1_gemm(A, 3, 0, 8, 2, stamp=None)
if S: S.finish(2)
fin("k1_kernel", ve, 256, lds, 8)
kernel_begin(A, "k2_kernel"); prologue(256, 8)
S = mk(1)
A("s_cmp_ge_u32 s3, 4")
A("s_cbranch_scc1 Lk2o")
A(f"s_mul_i32 s5, s3, {CONV_LDS}")
A("s_lshl_b32 s6, s2, 2")
A("s_add_u32 s6, s6, s3")
ve1 = conv_job(A, 6, 5, 8, 2, 0, barrier_after=1)
A("s_branch Lk2e")
A.label("Lk2o")
A("s_sub_u32 s3, s3, 4")
ve2, lds = k2_o(A, 2, 3, 0, 8, 2, 4*CONV_LDS)
A.label("Lk2e")
if S: S.finish(2)
fin("k2_kernel", max(ve1, ve2), 256, 4*CONV_LDS+lds, 8)
kernel_begin(A, "k3_kernel"); prologue(256, 8)
S = mk(2)
ve, lds, lend = k3_gemm(A, 3, 0, 8, 2, stamp=None)
A.label(lend)
if S: S.finish(2)
fin("k3_kernel", ve, 256, lds, 8)
hdr = "\n".join(launches) + '\n.amdgcn_target "amdgcn-amd-amdhsa--gfx950"\n.text\n'
open("v3st.s" if ST else "v3.s", "w").write(hdr + A.text() + '.section .rodata,"a"\n' + "".join(descs))
open("inter_st.py", "w").write('''
for k in range(3):
    nj = 2048
    a = ws[(32<<20)+(k<<20):(32<<20)+(k<<20)+nj*32].view(np.uint32).reshape(256, 8, 8).astype(np.int64)
    rt = a[:, :, 6:8]
    t0 = rt[:,:,0].min()
    print("kernel", k, "start spread us", (rt[:,:,0].max()-t0)/100, "last end", (rt[:,:,1].max()-t0)/100, "per-wave median end", np.median(rt[:,:,1]-t0, axis=0)/100, "cycles", np.median(a[:,:,1]-a[:,:,0], axis=0), "abs", t0)
''')
```

```python
from asmlib import *
from parta import *

class G: pass

def gemm_core3(A, NT, wpitch, sX, sW, sxoff, swoff, swave, lane, sbase, vbase, mode, NSTAGE=3, vtile_swapped=(), KT=16, stamp=None, fillers=None, fill_waves=None, fill_start=2, per_mfma=4):
    g = G()
    STAGE = 16384 + NT*8192
    g.lds = STAGE*NSTAGE
    NS = 1 if mode == "sym8" else 2
    NL = 8 if mode == "sym8" else 4
    nX = 16//NL; nW = NT*8//NL
    ND = nX + nW
    s = sbase
    sT0, sT1, sXs, sLw, sM = s, s+1, s+2, s+3, s+4
    sMX, sMW = sM + nW, sM + nW + 1
    g.send = sM + nW + 2
    v = vbase
    vXo = v
    vWo = v+2
    vt = v+3
    vXa = v+6
    vWa = vXa + 4*NSTAGE
    vfr = (vWa + NSTAGE + 3)//4*4
    FR = (NS+NT)*4
    vacc = vfr + 2*FR
    g.acc = [[vacc + (t*NS+st)*16 for st in range(NS)] for t in range(NT)]
    g.vend = vacc + NT*NS*16
    g.vfree = vfr
    g.vtmp = v
    g.lend = A.newlabel("Lend")
    vm = VM(A)
    def loader_setup():
        A(f"v_lshrrev_b32 v{vt}, 3, v{lane}")
        A(f"v_and_b32 v{vt+1}, 7, v{lane}")
        A(f"v_lshrrev_b32 v{vt+2}, 4, v{lane}")
        A(f"v_xor_b32 v{vXo}, v{vt+1}, v{vt+2}")
        A(f"v_xor_b32 v{vXo+1}, 4, v{vXo}")
        for j in range(2):
            A(f"v_lshlrev_b32 v{vXo+j}, 4, v{vXo+j}")
            A(f"v_lshl_add_u32 v{vXo+j}, v{vt}, 11, v{vXo+j}")
        A(f"v_and_b32 v{vt+2}, 2, v{vt}")
        A(f"v_lshlrev_b32 v{vt+2}, 1, v{vt+2}")
        A(f"v_xor_b32 v{vWo}, v{vt+1}, v{vt+2}")
        A(f"v_lshlrev_b32 v{vWo}, 4, v{vWo}")
        A(f"s_mov_b32 s{sT0}, {wpitch}")
        A(f"v_mul_lo_u32 v{vt+2}, v{vt}, s{sT0}")
        A(f"v_add_u32 v{vWo}, v{vWo}, v{vt+2}")
        A(f"s_and_b32 s{sLw}, s{swave}, {NL-1}")
        A(f"s_mul_i32 s{sT0}, s{sLw}, {nX*8*2048}")
        A(f"s_add_u32 s{sXs}, s{sxoff}, s{sT0}")
        A(f"s_mul_i32 s{sMX}, s{sLw}, {nX*1024}")
        A(f"s_mul_i32 s{sMW}, s{sLw}, {nW*1024}")
        for j in range(nW):
            A(f"s_mul_i32 s{sT0}, s{sLw}, {nW}")
            A(f"s_add_u32 s{sT0}, s{sT0}, {j}")
            A(f"s_lshr_b32 s{sT1}, s{sT0}, 3")
            A(f"s_and_b32 s{sT0}, s{sT0}, 7")
            A(f"s_lshl_b32 s{sT1}, s{sT1}, 11")
            A(f"s_mul_i32 s{sT0}, s{sT0}, {8*wpitch}")
            A(f"s_add_u32 s{sM+j}, s{sT0}, s{sT1}")
            A(f"s_add_u32 s{sM+j}, s{sM+j}, s{swoff}")
    def dma1(kt, idx):
        slot = kt % NSTAGE
        if idx < nX:
            i = idx
            A(f"s_add_u32 m0, s{sMX}, {slot*STAGE + i*1024}")
            A(f"s_add_u32 s{sT1}, s{sXs}, {i*16384 + kt*128}")
            vm.issue(f"buffer_load_dwordx4 v{vXo + (i&1)}, s[{sX}:{sX+3}], s{sT1} offen lds", ("st", kt))
        else:
            j = idx - nX
            A(f"s_add_u32 m0, s{sMW}, {slot*STAGE + 16384 + j*1024}")
            A(f"s_add_u32 s{sT1}, s{sM+j}, {kt*64*wpitch}")
            vm.issue(f"buffer_load_dwordx4 v{vWo}, s[{sW}:{sW+3}], s{sT1} offen lds", ("st", kt))
    def dma(kt):
        for idx in range(ND): dma1(kt, idx)
    PD = NSTAGE - 1
    if mode == "spec":
        lc = A.newlabel("Lcomp")
        A(f"s_cmp_lt_u32 s{swave}, 4")
        A(f"s_cbranch_scc1 {lc}")
        if stamp: stamp()
        loader_setup()
        if stamp: stamp()
        for kt in range(PD):
            dma(kt)
            if stamp: stamp()
        for kt in range(KT):
            vm.wait(("st", kt))
            if stamp: stamp()
            A("s_barrier")
            if kt+PD < KT: dma(kt+PD)
        A(f"s_branch {g.lend}")
        A.label(lc)
        vm = VM(A)
        if stamp: stamp.n = 1
    else:
        loader_setup()
        for kt in range(PD): dma(kt)
    A(f"v_and_b32 v{vt}, 31, v{lane}")
    A(f"v_lshrrev_b32 v{vt+1}, 1, v{vt}")
    A(f"v_and_b32 v{vt+1}, 7, v{vt+1}")
    A(f"v_lshrrev_b32 v{vt+2}, 5, v{lane}")
    A(f"v_xor_b32 v{vt+1}, v{vt+1}, v{vt+2}")
    A(f"s_lshr_b32 s{sT0}, s{swave}, 1")
    A(f"s_lshl_b32 s{sT0}, s{sT0}, {12 if NS==1 else 13}")
    A(f"v_lshlrev_b32 v{vt}, 7, v{vt}")
    A(f"v_add_u32 v{vt}, s{sT0}, v{vt}")
    for ks in range(4):
        A(f"v_xor_b32 v{vXa+ks}, {2*ks}, v{vt+1}")
        A(f"v_lshl_add_u32 v{vXa+ks}, v{vXa+ks}, 4, v{vt}")
        for sl in range(1, NSTAGE):
            A(f"v_add_u32 v{vXa+4*sl+ks}, {sl*STAGE}, v{vXa+ks}")
    A(f"v_lshrrev_b32 v{vt}, 4, v{lane}")
    A(f"v_and_b32 v{vt+1}, 1, v{vt}")
    A(f"v_lshlrev_b32 v{vt+1}, 1, v{vt+1}")
    A(f"v_bfe_u32 v{vt+2}, v{lane}, 1, 1")
    A(f"v_add_u32 v{vt+1}, v{vt+1}, v{vt+2}")
    A(f"s_and_b32 s{sT0}, s{swave}, 1")
    A(f"s_lshl_b32 s{sT0}, s{sT0}, 2")
    A(f"v_add_u32 v{vt+1}, s{sT0}, v{vt+1}")
    A(f"v_bfe_u32 v{vt+2}, v{lane}, 3, 1")
    A(f"v_lshlrev_b32 v{vt+2}, 2, v{vt+2}")
    A(f"v_xor_b32 v{vt+1}, v{vt+1}, v{vt+2}")
    A(f"v_lshlrev_b32 v{vWa}, 4, v{vt+1}")
    A(f"v_and_b32 v{vt+1}, 1, v{lane}")
    A(f"v_lshl_add_u32 v{vWa}, v{vt+1}, 3, v{vWa}")
    A(f"v_lshrrev_b32 v{vt}, 1, v{vt}")
    A(f"v_lshlrev_b32 v{vt}, 3, v{vt}")
    A(f"v_bfe_u32 v{vt+1}, v{lane}, 2, 2")
    A(f"v_add_u32 v{vt}, v{vt}, v{vt+1}")
    A(f"v_lshl_add_u32 v{vWa}, v{vt}, 7, v{vWa}")
    for sl in range(1, NSTAGE):
        A(f"v_add_u32 v{vWa+sl}, {sl*STAGE}, v{vWa}")
    for j in range(NT*NS*16): A(f"v_mov_b32 v{vacc+j}, 0")
    def fx(set_, st): return vfr + set_*FR + st*4
    def fw(set_, t): return vfr + set_*FR + NS*4 + t*4
    def read_list(kt, ks):
        slot = kt % NSTAGE; set_ = (kt*4+ks) % 2
        out = []
        for st in range(NS):
            out.append(f"ds_read_b128 v[{fx(set_,st)}:{fx(set_,st)+3}], v{vXa+4*slot+ks} offset:{st*4096}")
        for t in range(NT):
            for jh in range(2):
                out.append(f"ds_read_b64_tr_b16 v[{fw(set_,t)+2*jh}:{fw(set_,t)+2*jh+1}], v{vWa+slot} offset:{16384 + t*8192 + (16*ks+4*jh)*128}")
        return out
    def reads(kt, ks):
        for r in read_list(kt, ks): A(r)
    def mfma_list(kt, ks):
        set_ = (kt*4+ks) % 2
        out = []
        for t in range(NT):
            for st in range(NS):
                a = g.acc[t][st]
                x = f"v[{fx(set_,st)}:{fx(set_,st)+3}]"; w = f"v[{fw(set_,t)}:{fw(set_,t)+3}]"
                import os
                if os.environ.get("FAKE16"):
                    b = a + 8*(ks%2)
                    out.append(f"v_mfma_f32_16x16x32_bf16 v[{b}:{b+3}], {x}, {w}, v[{b}:{b+3}]\nv_mfma_f32_16x16x32_bf16 v[{b+4}:{b+7}], {w}, {x}, v[{b+4}:{b+7}]")
                elif t in vtile_swapped: out.append(f"v_mfma_f32_32x32x16_bf16 v[{a}:{a+15}], {x}, {w}, v[{a}:{a+15}]")
                else:                  out.append(f"v_mfma_f32_32x32x16_bf16 v[{a}:{a+15}], {w}, {x}, v[{a}:{a+15}]")
        return out
    def mainloop(vm, pre, body):
        if pre: play(A, vm, pre)
        if mode == "sym8": vm.wait(("st", 0))
        A("s_barrier")
        if stamp: stamp()
        reads(0, 0)
        for kt in range(KT):
            pend = list(range(ND)) if (mode == "sym8" and kt+PD < KT) else []
            mi = 0
            if stamp and kt > 0: stamp()
            for ks in range(4):
                A("s_waitcnt lgkmcnt(0)")
                rl = []
                if ks < 3:
                    rl = read_list(kt, ks+1)
                elif kt+1 < KT:
                    if mode == "sym8":
                        while pend: dma1(kt+PD, pend.pop(0))
                        vm.wait(("st", kt+1))
                    A("s_barrier")
                    rl = read_list(kt+1, 0)
                ml = mfma_list(kt, ks)
                rper = -(-len(rl) // max(1, len(ml)-2)) if len(ml) > 2 else len(rl)
                for m in ml:
                    A(m)
                    for _ in range(rper):
                        if rl: A(rl.pop(0))
                    mi += 1
                    if pend and ks < 3 and (mi % 2 == 1):
                        dma1(kt+PD, pend.pop(0))
                    if body and kt >= fill_start: play(A, vm, body, per_mfma)
        if body: play(A, vm, body)
        if stamp: stamp()
    import copy
    if fillers and fill_waves is not None:
        lb = A.newlabel("Lnofill"); lj = A.newlabel("Ljoin")
        A(f"s_cmp_ge_u32 s{swave}, {fill_waves}")
        A(f"s_cbranch_scc1 {lb}")
        q0 = list(vm.q)
        if stamp: n0 = stamp.n
        mainloop(vm, list(fillers[0].items), list(fillers[1].items))
        A(f"s_branch {lj}")
        A.label(lb)
        vm.q = q0
        if stamp: stamp.n = n0
        mainloop(vm, None, None)
        A.label(lj)
    elif fillers:
        mainloop(vm, list(fillers[0].items), list(fillers[1].items))
    else:
        mainloop(vm, None, None)
    return g
```

```python
from asmlib import *
from parta import *
from gemm3 import *
from parta2 import *
from partb import xhalf, wg_map, wphi_addr, wphi_reads, LOG2E, ST_SZ

NPART = 16

def featmap(A, b0, b1, w0, w1, P, EP, t, out, sc):
    A(f"v_mfma_f32_32x32x16_bf16 v[{P}:{P+15}], v[{w0}:{w0+3}], v[{b0}:{b0+3}], 0")
    A(f"v_mfma_f32_32x32x16_bf16 v[{P}:{P+15}], v[{w1}:{w1+3}], v[{b1}:{b1+3}], v[{P}:{P+15}]")
    A("s_nop 7"); A("s_nop 4")
    for i in range(8): round2(A, P+2*i, P+2*i+1, t)
    mx, mn, sp, sm = t+1, t+2, t+3, t+4
    A(f"v_max3_f32 v{mx}, v{P}, v{P+1}, v{P+2}")
    A(f"v_min3_f32 v{mn}, v{P}, v{P+1}, v{P+2}")
    for i in range(3, 15, 2):
        A(f"v_max3_f32 v{mx}, v{mx}, v{P+i}, v{P+i+1}")
        A(f"v_min3_f32 v{mn}, v{mn}, v{P+i}, v{P+i+1}")
    A(f"v_max_f32 v{mx}, v{mx}, v{P+15}")
    A(f"v_min_f32 v{mn}, v{mn}, v{P+15}")
    xhalf(A, "v_max_f32", mx, t+5, t+6)
    xhalf(A, "v_min_f32", mn, t+5, t+6)
    A(f"v_mul_f32 v{mx}, s{sc}, v{mx}")
    A(f"v_mul_f32 v{mn}, s{sc}, v{mn}")
    for i in range(16):
        A(f"v_fma_f32 v{EP+i}, v{P+i}, s{sc}, -v{mx}")
        A(f"v_fma_f32 v{P+i}, -v{P+i}, s{sc}, v{mn}")
        A(f"v_exp_f32 v{EP+i}, v{EP+i}")
        A(f"v_exp_f32 v{P+i}, v{P+i}")
    A("s_nop 0")
    A(f"v_add_f32 v{sp}, v{EP}, v{EP+1}")
    A(f"v_add_f32 v{sm}, v{P}, v{P+1}")
    for i in range(2, 16):
        A(f"v_add_f32 v{sp}, v{sp}, v{EP+i}")
        A(f"v_add_f32 v{sm}, v{sm}, v{P+i}")
    xhalf(A, "v_add_f32", sp, t+5, t+6)
    xhalf(A, "v_add_f32", sm, t+5, t+6)
    A(f"v_rcp_f32 v{sp}, v{sp}")
    A(f"v_rcp_f32 v{sm}, v{sm}")
    A("s_nop 0")
    for i in range(16):
        A(f"v_mul_f32 v{EP+i}, v{EP+i}, v{sp}")
        A(f"v_mul_f32 v{P+i}, v{P+i}, v{sm}")
    for i in range(8):
        A(f"v_cvt_pk_bf16_f32 v{out+i}, v{EP+2*i}, v{EP+2*i+1}")
        A(f"v_cvt_pk_bf16_f32 v{out+8+i}, v{P+2*i}, v{P+2*i+1}")

def store_tile(A, a, o, vaddr, srd, extra=""):
    for gq in range(4):
        A(f"v_cvt_pk_bf16_f32 v{o+2*gq}, v{a+4*gq}, v{a+4*gq+1}")
        A(f"v_cvt_pk_bf16_f32 v{o+2*gq+1}, v{a+4*gq+2}, v{a+4*gq+3}")
    A("s_nop 1")
    for pr in range(2):
        A(f"v_permlane32_swap_b32 v{o+4*pr}, v{o+4*pr+2}")
        A(f"v_permlane32_swap_b32 v{o+4*pr+1}, v{o+4*pr+3}")
    for pr in range(2):
        A(f"buffer_store_dwordx4 v[{o+4*pr}:{o+4*pr+3}], v{vaddr}, s[{srd}:{srd+3}], 0 offen offset:{32*pr}")

def k1_gemm(A, swave, lane, sbase, vbase, stamp=None, with_apre=True):
    import os
    if os.environ.get('NOAPRE'): with_apre = False
    s = sbase
    sX, sW, sPH, sQ, sS = s, s+4, s+8, s+12, s+16
    sP = s+20
    srb, shp, sxo, swo, st0, shead, sc, st1 = s+28, s+29, s+30, s+31, s+32, s+33, s+34, s+35
    A(f"s_load_dwordx4 s[{sP}:{sP+3}], s[0:1], 48")
    A(f"s_load_dwordx2 s[{sP+4}:{sP+5}], s[0:1], 64")
    A(f"s_load_dwordx2 s[{sP+6}:{sP+7}], s[0:1], 96")
    wg_map(A, srb, shp, st0)
    import os
    if os.environ.get("SAMETILE"):
        A(f"s_and_b32 s{srb}, s{srb}, 1"); A(f"s_and_b32 s{shp}, s{shp}, 1")
    A(f"s_lshl_b32 s{sxo}, s{srb}, 18")
    A(f"s_lshl_b32 s{swo}, s{shp}, 7")
    A(f"s_and_b32 s{st0}, s{swave}, 1")
    A(f"s_lshl_b32 s{shead}, s{shp}, 1")
    A(f"s_add_u32 s{shead}, s{shead}, s{st0}")
    A(f"s_mov_b32 s{sc}, {LOG2E}")
    A("s_waitcnt lgkmcnt(0)")
    make_srd(A, sX, sP, MB4); make_srd(A, sW, sP+2, 6<<20); make_srd(A, sPH, sP+4, 65536)
    make_srd(A, sQ, sP+6, MB4, WS_Q); make_srd(A, sS, sP+6, 32*NPART*ST_SZ, WS_ST)
    PH_OFF = 3*(16384+3*8192)
    HO_OFF = PH_OFF + 4096
    vt = vbase
    A(f"v_lshlrev_b32 v{vt}, 4, v{lane}")
    l1 = A.newlabel()
    A(f"s_cmp_ge_u32 s{swave}, 4")
    A(f"s_cbranch_scc1 {l1}")
    A(f"s_lshl_b32 s{st0}, s{swave}, 10")
    A(f"s_add_u32 m0, s{st0}, {PH_OFF}")
    A(f"s_lshl_b32 s{st1}, s{shp}, 12")
    A(f"s_add_u32 s{st0}, s{st0}, s{st1}")
    A(f"buffer_load_dwordx4 v{vt}, s[{sPH}:{sPH+3}], s{st0} offen lds")
    A.label(l1)
    fl = None; vend_f = 0
    VF = 160
    if with_apre:
        sJ = s+50
        A(f"s_lshl_b32 s{sJ}, s2, 2")
        A(f"s_add_u32 s{sJ}, s{sJ}, s{swave}")
        Pp, Bb, vend_f, _ = apre_rec(sJ, s+52, VF, lane, 4)
        fl = (Pp, Bb)
    g = gemm_core3(A, 3, 6144, sX, sW, sxo, swo, swave, lane, s+36, vbase, "spec", 3, vtile_swapped=(2,), stamp=stamp, fillers=fl, fill_start=3, per_mfma=2)
    assert g.vend <= VF and g.send <= s+50, (g.vend, g.send)
    e = (g.vend+3)//4*4
    P, EP, PHI, TD = e, e+16, e+32, e+48
    f = g.vfree
    ID = f; WF = f+8; t = f+16; ZS = f+24; va = f+26
    vend = max(e+64, vend_f)
    Qs, Ks, Vs = g.acc
    Q, K, V = Qs[0], Ks[0], Vs[0]
    hi = va+1
    A("s_waitcnt vmcnt(0)")
    A(f"v_lshlrev_b32 v{va+3}, 4, v{lane}")
    A(f"s_lshl_b32 s{st0}, s{swave}, 12")
    A(f"s_add_u32 s{st0}, s{st0}, {HO_OFF}")
    A(f"v_add_u32 v{va+4}, s{st0}, v{va+3}")
    A("s_nop 7")
    for i in range(8):
        A(f"v_cvt_pk_bf16_f32 v{Ks[1]+i}, v{Ks[1]+2*i}, v{Ks[1]+2*i+1}")
        A(f"v_cvt_pk_bf16_f32 v{Vs[1]+i}, v{Vs[1]+2*i}, v{Vs[1]+2*i+1}")
    for j in range(2):
        A(f"ds_write_b128 v{va+4}, v[{Ks[1]+4*j}:{Ks[1]+4*j+3}] offset:{1024*j}")
        A(f"ds_write_b128 v{va+4}, v[{Vs[1]+4*j}:{Vs[1]+4*j+3}] offset:{2048+1024*j}")
    for i in range(8):
        A(f"v_cvt_pk_bf16_f32 v{K+i}, v{K+2*i}, v{K+2*i+1}")
        A(f"v_cvt_pk_bf16_f32 v{V+i}, v{V+2*i}, v{V+2*i+1}")
    A("s_waitcnt lgkmcnt(0)")
    A("s_barrier")
    A(f"v_lshrrev_b32 v{hi}, 5, v{lane}")
    A(f"s_lshr_b32 s{st0}, s{swave}, 1")
    A(f"s_lshl_b32 s{st0}, s{st0}, 17")
    A(f"s_add_u32 s{st0}, s{st0}, s{sxo}")
    A(f"v_and_b32 v{va+2}, 31, v{lane}")
    A(f"v_lshlrev_b32 v{va+2}, 11, v{va+2}")
    A(f"v_lshl_add_u32 v{va+2}, v{hi}, 4, v{va+2}")
    A(f"v_add_u32 v{va+2}, s{st0}, v{va+2}")
    A(f"s_lshl_b32 s{st0}, s{shead}, 6")
    A(f"v_add_u32 v{va+2}, s{st0}, v{va+2}")
    A(f"v_add_u32 v{va+5}, 0x10000, v{va+2}")
    store_tile(A, Qs[0], TD, va+2, sQ)
    store_tile(A, Qs[1], TD+8, va+5, sQ)
    lj = A.newlabel("Lepi")
    A(f"s_branch {lj}")
    A.label(g.lend)
    A("s_barrier")
    A(f"v_lshlrev_b32 v{va+3}, 4, v{lane}")
    A(f"s_sub_u32 s{st0}, s{swave}, 4")
    A(f"s_lshl_b32 s{st0}, s{st0}, 12")
    A(f"s_add_u32 s{st0}, s{st0}, {HO_OFF}")
    A(f"v_add_u32 v{va+4}, s{st0}, v{va+3}")
    for j in range(2):
        A(f"ds_read_b128 v[{K+4*j}:{K+4*j+3}], v{va+4} offset:{1024*j}")
        A(f"ds_read_b128 v[{V+4*j}:{V+4*j+3}], v{va+4} offset:{2048+1024*j}")
    A(f"v_lshrrev_b32 v{hi}, 5, v{lane}")
    A.label(lj)
    wphi_addr(A, va, lane, t, False)
    A(f"s_and_b32 s{st0}, s{swave}, 1")
    A(f"s_lshl_b32 s{st0}, s{st0}, 11")
    A(f"s_add_u32 s{st0}, s{st0}, {PH_OFF}")
    A(f"v_add_u32 v{va}, s{st0}, v{va}")
    wphi_reads(A, WF, va, 0, False)
    A(f"v_and_b32 v{t}, 31, v{lane}")
    A(f"v_lshlrev_b32 v{t+1}, 2, v{hi}")
    A(f"v_sub_u32 v{t}, v{t}, v{t+1}")
    A(f"v_mov_b32 v{t+2}, 0x3f80")
    A(f"v_mov_b32 v{t+3}, 0x3f800000")
    for k in range(2):
        for i in range(4):
            j = 2*i
            f0 = 16*k + 8*(j//4) + j%4
            A(f"v_cmp_eq_u32 vcc, {f0}, v{t}")
            A(f"v_cmp_eq_u32 s[{sP}:{sP+1}], {f0+1}, v{t}")
            A("s_nop 0")
            A(f"v_cndmask_b32 v{ID+4*k+i}, 0, v{t+2}, vcc")
            A(f"v_cndmask_b32 v{t+1}, 0, v{t+3}, s[{sP}:{sP+1}]")
            A(f"v_or_b32 v{ID+4*k+i}, v{ID+4*k+i}, v{t+1}")
    A("s_waitcnt lgkmcnt(0)")
    if stamp: stamp.n = 40; stamp()
    featmap(A, K, K+4, WF, WF+4, P, EP, t, PHI, sc)
    A("s_nop 1")
    for sg, D in ((0, TD), (1, P)):
        A(f"v_mfma_f32_32x32x16_bf16 v[{D}:{D+15}], v[{PHI+8*sg}:{PHI+8*sg+3}], v[{ID}:{ID+3}], 0")
        A(f"v_mfma_f32_32x32x16_bf16 v[{D}:{D+15}], v[{PHI+8*sg+4}:{PHI+8*sg+7}], v[{ID+4}:{ID+7}], v[{D}:{D+15}]")
    A("s_nop 7"); A("s_nop 4")
    for sg, D in ((0, TD), (1, P)):
        for i in range(8): A(f"v_cvt_pk_bf16_f32 v{EP+8*sg+i}, v{D+2*i}, v{D+2*i+1}")
    A("s_nop 1")
    KVA = [Q, PHI]
    for sg in range(2):
        a = KVA[sg]
        A(f"v_mfma_f32_32x32x16_bf16 v[{a}:{a+15}], v[{EP+8*sg}:{EP+8*sg+3}], v[{V}:{V+3}], 0")
        A(f"v_mfma_f32_32x32x16_bf16 v[{a}:{a+15}], v[{EP+8*sg+4}:{EP+8*sg+7}], v[{V+4}:{V+7}], v[{a}:{a+15}]")
    for sg, D in ((0, TD), (1, P)):
        A(f"v_add_f32 v{ZS+sg}, v{D}, v{D+1}")
        for i in range(2, 16): A(f"v_add_f32 v{ZS+sg}, v{ZS+sg}, v{D+i}")
    xhalf(A, "v_add_f32", ZS, t, t+1)
    xhalf(A, "v_add_f32", ZS+1, t, t+1)
    A(f"v_cmp_gt_u32 vcc, 32, v{lane}")
    A("s_nop 1")
    A(f"v_cndmask_b32 v{ZS}, v{ZS+1}, v{ZS}, vcc")
    if stamp: stamp()
    A(f"s_mul_i32 s{st0}, s{swave}, {9*1024}")
    A(f"v_add_u32 v{va+4}, s{st0}, v{va+3}")
    for sg in range(2):
        for gq in range(4):
            a = KVA[sg] + 4*gq
            A(f"ds_write_b128 v{va+4}, v[{a}:{a+3}] offset:{(sg*4+gq)*1024}")
    A(f"ds_write_b32 v{va+4}, v{ZS} offset:{8*1024}")
    A("s_waitcnt lgkmcnt(0)")
    A("s_barrier")
    A(f"s_and_b32 s{st0}, s{swave}, 1")
    A(f"s_mul_i32 s{st0}, s{st0}, {9*1024}")
    A(f"s_lshr_b32 s{st1}, s{swave}, 1")
    A(f"s_lshl_b32 s{sc}, s{st1}, 11")
    A(f"s_add_u32 s{st0}, s{st0}, s{sc}")
    A(f"v_add_u32 v{va+4}, s{st0}, v{va+3}")
    R = P
    for src in range(4):
        for gg in range(2):
            r = R + (src*2+gg)*4
            A(f"ds_read_b128 v[{r}:{r+3}], v{va+4} offset:{src*2*9*1024 + gg*1024}")
    A(f"s_and_b32 s{st0}, s{swave}, 1")
    A(f"s_mul_i32 s{st0}, s{st0}, {9*1024}")
    A(f"v_add_u32 v{va+5}, s{st0}, v{va+3}")
    for src in range(4):
        A(f"ds_read_b32 v{t+src}, v{va+5} offset:{src*2*9*1024 + 8*1024}")
    A(f"s_lshl_b32 s{st0}, s{shead}, 4")
    A(f"s_add_u32 s{st0}, s{st0}, s{srb}")
    A(f"s_mul_i32 s{st0}, s{st0}, {ST_SZ}")
    A(f"s_lshl_b32 s{sc}, s{st1}, 11")
    A(f"s_add_u32 s{sc}, s{sc}, s{st0}")
    A("s_waitcnt lgkmcnt(0)")
    for gg in range(2):
        for j in range(4):
            r = R + gg*4 + j
            A(f"v_add_f32 v{r}, v{r}, v{r+8}")
            A(f"v_add_f32 v{r+16}, v{r+16}, v{r+24}")
            A(f"v_add_f32 v{r}, v{r}, v{r+16}")
        A(f"buffer_store_dwordx4 v[{R+gg*4}:{R+gg*4+3}], v{va+3}, s[{sS}:{sS+3}], s{sc} offen offset:{1024*gg}")
    l2 = A.newlabel()
    A(f"s_cmp_lg_u32 s{st1}, 0")
    A(f"s_cbranch_scc1 {l2}")
    A(f"v_add_f32 v{t}, v{t}, v{t+1}")
    A(f"v_add_f32 v{t+2}, v{t+2}, v{t+3}")
    A(f"v_add_f32 v{t}, v{t}, v{t+2}")
    A(f"v_lshlrev_b32 v{va+3}, 2, v{lane}")
    A(f"s_add_u32 s{st0}, s{st0}, 8192")
    A(f"buffer_store_dword v{t}, v{va+3}, s[{sS}:{sS+3}], s{st0} offen")
    A.label(l2)
    if stamp: stamp()
    return vend, HO_OFF + 16384

def k2_o(A, swg, swave, lane, sbase, vbase, ldsbase, stamp=None):
    s = sbase
    sPH, sQ, sS, sO = s, s+4, s+8, s+12
    sP = s+16
    shead, srb, st0, sc, st1 = s+24, s+25, s+26, s+27, s+28
    A(f"s_load_dwordx2 s[{sP+4}:{sP+5}], s[0:1], 64")
    A(f"s_load_dwordx2 s[{sP+6}:{sP+7}], s[0:1], 96")
    A(f"s_and_b32 s{shead}, s{swg}, 7")
    A(f"s_lshl_b32 s{shead}, s{shead}, 2")
    A(f"s_bfe_u32 s{st0}, s{swg}, 0x20003")
    A(f"s_add_u32 s{shead}, s{shead}, s{st0}")
    A(f"s_lshr_b32 s{srb}, s{swg}, 5")
    A(f"s_mov_b32 s{sc}, {LOG2E}")
    A("s_waitcnt lgkmcnt(0)")
    make_srd(A, sPH, sP+4, 65536)
    make_srd(A, sQ, sP+6, MB4, WS_Q); make_srd(A, sS, sP+6, 32*NPART*ST_SZ, WS_ST); make_srd(A, sO, sP+6, MB4, WS_O)
    v = vbase
    va = v
    hi = v+6
    vl = v+7
    t = v+8
    QF = v+16
    WF = QF+16
    KF = WF+8
    ZF = KF+16
    P = ZF+16; EP = P+16; PHI = EP+16
    NUM = PHI+16; DEN = NUM+16
    LD = P
    ZL = KF
    vend = LD+128
    A(f"v_lshrrev_b32 v{hi}, 5, v{lane}")
    A(f"v_lshlrev_b32 v{va}, 4, v{lane}")
    A(f"v_add_u32 v{vl}, {ldsbase}, v{va}")
    A(f"s_mul_i32 s{st0}, s{shead}, {NPART*ST_SZ}")
    A(f"s_lshl_b32 s{st1}, s{swave}, 11")
    A(f"s_add_u32 s{st0}, s{st0}, s{st1}")
    for p in range(NPART):
        A(f"s_add_u32 s{st1}, s{st0}, {p*ST_SZ}")
        A(f"buffer_load_dwordx4 v[{LD+8*p}:{LD+8*p+3}], v{va}, s[{sS}:{sS+3}], s{st1} offen")
        A(f"buffer_load_dwordx4 v[{LD+8*p+4}:{LD+8*p+7}], v{va}, s[{sS}:{sS+3}], s{st1} offen offset:1024")
    A(f"s_lshl_b32 s{st0}, s{srb}, 2")
    A(f"s_add_u32 s{st0}, s{st0}, s{swave}")
    A(f"s_lshl_b32 s{st0}, s{st0}, 17")
    A(f"s_lshl_b32 s{st1}, s{shead}, 6")
    A(f"s_add_u32 s{st0}, s{st0}, s{st1}")
    A(f"v_and_b32 v{va+1}, 31, v{lane}")
    A(f"v_lshlrev_b32 v{va+1}, 11, v{va+1}")
    A(f"v_add_u32 v{va+1}, s{st0}, v{va+1}")
    A(f"v_lshl_add_u32 v{va+2}, v{hi}, 4, v{va+1}")
    A(f"v_add_u32 v{va+3}, 0x10000, v{va+2}")
    for st in range(2):
        for k in range(2):
            A(f"buffer_load_dwordx4 v[{QF+8*st+4*k}:{QF+8*st+4*k+3}], v{va+2+st}, s[{sQ}:{sQ+3}], 0 offen offset:{32*k}")
    l1 = A.newlabel(); l2 = A.newlabel()
    A(f"s_cmp_ge_u32 s{swave}, 2")
    A(f"s_cbranch_scc1 {l1}")
    A(f"s_lshl_b32 s{st1}, s{swave}, 10")
    A(f"s_add_u32 m0, s{st1}, {ldsbase}")
    A(f"s_lshl_b32 s{st0}, s{shead}, 11")
    A(f"s_add_u32 s{st0}, s{st0}, s{st1}")
    A(f"buffer_load_dwordx4 v{va}, s[{sPH}:{sPH+3}], s{st0} offen lds")
    A.label(l1)
    A(f"s_cmp_lg_u32 s{swave}, 3")
    A(f"s_cbranch_scc1 {l2}")
    A(f"v_lshrrev_b32 v{t}, 4, v{lane}")
    A(f"s_mov_b32 s{st1}, {ST_SZ}")
    A(f"v_mul_lo_u32 v{t}, v{t}, s{st1}")
    A(f"v_and_b32 v{t+1}, 15, v{lane}")
    A(f"v_lshl_add_u32 v{t}, v{t+1}, 4, v{t}")
    A(f"s_mul_i32 s{st0}, s{shead}, {NPART*ST_SZ}")
    for b in range(4):
        A(f"s_add_u32 s{st1}, s{st0}, {4*b*ST_SZ + 8192}")
        A(f"buffer_load_dwordx4 v[{ZL+4*b}:{ZL+4*b+3}], v{t}, s[{sS}:{sS+3}], s{st1} offen")
    A.label(l2)
    for p in range(1, NPART):
        A(f"s_waitcnt vmcnt({2*(NPART-1-p)+4})")
        for j in range(8): A(f"v_add_f32 v{LD+j}, v{LD+j}, v{LD+8*p+j}")
    if stamp: stamp()
    for i in range(4): A(f"v_cvt_pk_bf16_f32 v{t+i}, v{LD+2*i}, v{LD+2*i+1}")
    A(f"s_lshl_b32 s{st1}, s{swave}, 10")
    A(f"v_add_u32 v{t+4}, s{st1}, v{vl}")
    A(f"ds_write_b128 v{t+4}, v[{t}:{t+3}] offset:2048")
    A("s_waitcnt vmcnt(0)")
    l3 = A.newlabel()
    A(f"s_cmp_lg_u32 s{swave}, 3")
    A(f"s_cbranch_scc1 {l3}")
    for j in range(4):
        A(f"v_add_f32 v{ZL+j}, v{ZL+j}, v{ZL+4+j}")
        A(f"v_add_f32 v{ZL+8+j}, v{ZL+8+j}, v{ZL+12+j}")
        A(f"v_add_f32 v{ZL+j}, v{ZL+j}, v{ZL+8+j}")
    for j in range(4):
        xhalf(A, "v_add_f32", ZL+j, t+5, t+6)
        A(f"v_mov_b32 v{t+5}, v{ZL+j}")
        A(f"v_mov_b32 v{t+6}, v{ZL+j}")
        A("s_nop 1")
        A(f"v_permlane16_swap_b32 v{t+5}, v{t+6}")
        A("s_nop 1")
        A(f"v_add_f32 v{ZL+j}, v{t+5}, v{t+6}")
    A(f"v_cvt_pk_bf16_f32 v{t}, v{ZL}, v{ZL+1}")
    A(f"v_cvt_pk_bf16_f32 v{t+1}, v{ZL+2}, v{ZL+3}")
    A(f"v_and_b32 v{t+2}, 15, v{lane}")
    A(f"v_lshlrev_b32 v{t+2}, 3, v{t+2}")
    A(f"v_add_u32 v{t+2}, {ldsbase+6144}, v{t+2}")
    A(f"ds_write_b64 v{t+2}, v[{t}:{t+1}]")
    A.label(l3)
    A("s_waitcnt lgkmcnt(0)")
    A(f"v_mov_b32 v{t+4}, {ldsbase+6144+128}")
    A(f"v_mov_b32 v{t+5}, 1")
    A(f"v_cmp_eq_u32 vcc, 0, v{lane}")
    A(f"s_and_saveexec_b64 s[{sP}:{sP+1}], vcc")
    A(f"ds_add_u32 v{t+4}, v{t+5}")
    A(f"s_mov_b64 exec, s[{sP}:{sP+1}]")
    lsp = A.newlabel("Lspin")
    A.label(lsp)
    A(f"ds_read_b32 v{t+5}, v{t+4}")
    A("s_waitcnt lgkmcnt(0)")
    A(f"v_readfirstlane_b32 s{st1}, v{t+5}")
    A("s_nop 3")
    A(f"s_cmp_lt_u32 s{st1}, 4")
    A(f"s_cbranch_scc1 {lsp}")
    if stamp: stamp()
    A(f"v_lshlrev_b32 v{t+2}, 3, v{hi}")
    A(f"v_add_u32 v{t+2}, {ldsbase+6144}, v{t+2}")
    for k in range(4):
        A(f"ds_read_b128 v[{KF+4*k}:{KF+4*k+3}], v{vl} offset:{2048+1024*k}")
        A(f"ds_read_b64 v[{ZF+4*k}:{ZF+4*k+1}], v{t+2} offset:{32*k}")
        A(f"ds_read_b64 v[{ZF+4*k+2}:{ZF+4*k+3}], v{t+2} offset:{32*k+16}")
    wphi_addr(A, va+4, lane, t, True)
    A(f"v_add_u32 v{va+4}, {ldsbase}, v{va+4}")
    wphi_reads(A, WF, va+4, 0, True)
    A(f"s_mov_b32 s{st1}, 0x358637bd")
    A("s_waitcnt lgkmcnt(0)")
    OB = (DEN+16+3)//4*4
    for st in range(2):
        featmap(A, QF+8*st, QF+8*st+4, WF, WF+4, P, EP, t, PHI, sc)
        A("s_nop 1")
        for k in range(4):
            c0 = "0" if k == 0 else f"v[{NUM}:{NUM+15}]"
            A(f"v_mfma_f32_32x32x16_bf16 v[{NUM}:{NUM+15}], v[{KF+4*k}:{KF+4*k+3}], v[{PHI+4*k}:{PHI+4*k+3}], {c0}")
        for k in range(4):
            c0 = "0" if k == 0 else f"v[{DEN}:{DEN+15}]"
            A(f"v_mfma_f32_32x32x16_bf16 v[{DEN}:{DEN+15}], v[{ZF+4*k}:{ZF+4*k+3}], v[{PHI+4*k}:{PHI+4*k+3}], {c0}")
        A("s_nop 7"); A("s_nop 4")
        A(f"v_mov_b32 v{t+1}, s{st1}")
        round2(A, DEN, t+1, t)
        A(f"v_add_f32 v{DEN}, v{DEN}, v{t+1}")
        round2(A, DEN, t+1, t)
        A(f"v_rcp_f32 v{DEN}, v{DEN}")
        for i in range(8): round2(A, NUM+2*i, NUM+2*i+1, t)
        for i in range(16): A(f"v_mul_f32 v{NUM+i}, v{NUM+i}, v{DEN}")
        store_tile(A, NUM, OB + 8*st, va+2+st, sO)
    return vend, 6144+128+64

def k3_gemm(A, swave, lane, sbase, vbase, NSTAGE=4, stamp=None, with_apost=True):
    s = sbase
    sX, sW, sO = s, s+4, s+8
    sP = s+12
    srb, snb, sxo, swo, st0 = s+20, s+21, s+22, s+23, s+24
    A(f"s_load_dwordx2 s[{sP}:{sP+1}], s[0:1], 72")
    A(f"s_load_dwordx2 s[{sP+2}:{sP+3}], s[0:1], 80")
    A(f"s_load_dwordx2 s[{sP+6}:{sP+7}], s[0:1], 96")
    wg_map(A, srb, snb, st0)
    A(f"s_lshl_b32 s{sxo}, s{srb}, 18")
    A(f"s_lshl_b32 s{swo}, s{snb}, 7")
    A("s_waitcnt lgkmcnt(0)")
    make_srd(A, sX, sP+6, MB4, WS_O); make_srd(A, sW, sP, 2<<20); make_srd(A, sO, sP+2, 2*MB4)
    fl = None; vend_f = 0
    if with_apost:
        sJ = s+40
        A(f"s_lshl_b32 s{sJ}, s2, 2")
        A(f"s_add_u32 s{sJ}, s{sJ}, s{swave}")
        Pp, Bb, vend_f, _ = apost_rec(sJ, s+44, 104, lane)
        fl = (Pp, Bb)
    g = gemm_core3(A, 1, 2048, sX, sW, sxo, swo, swave, lane, s+28, vbase, "spec", NSTAGE, stamp=stamp, fillers=fl, fill_start=4, per_mfma=4)
    assert g.vend+16 <= 104 and g.send <= s+40
    e = g.vend
    va = g.vtmp
    A(f"s_lshr_b32 s{st0}, s{swave}, 1")
    A(f"s_lshl_b32 s{st0}, s{st0}, 18")
    A(f"s_lshl_b32 s{sxo}, s{srb}, 19")
    A(f"s_add_u32 s{st0}, s{st0}, s{sxo}")
    A(f"s_add_u32 s{st0}, s{st0}, s{swo}")
    A(f"s_and_b32 s{sxo}, s{swave}, 1")
    A(f"s_lshl_b32 s{sxo}, s{sxo}, 6")
    A(f"s_add_u32 s{st0}, s{st0}, s{sxo}")
    A(f"s_add_u32 s{st0}, s{st0}, 2048")
    A(f"v_and_b32 v{va}, 31, v{lane}")
    A(f"v_lshlrev_b32 v{va}, 12, v{va}")
    A(f"v_lshrrev_b32 v{va+1}, 5, v{lane}")
    A(f"v_lshl_add_u32 v{va}, v{va+1}, 4, v{va}")
    A(f"v_add_u32 v{va}, s{st0}, v{va}")
    A(f"v_add_u32 v{va+1}, 0x20000, v{va}")
    A("s_nop 7"); A("s_nop 4")
    for st in range(2):
        store_tile(A, g.acc[0][st], e + 8*st, va+st, sO)
    return max(g.vend+16, vend_f), g.lds, g.lend
```

```python
from asmlib import *
class Stamper:
    def __init__(self, A, kidx, sjob):
        self.A = A; self.k = kidx; self.n = 0; self.sjob = sjob
    def __call__(self, wait=True):
        A = self.A
        if self.n == 0:
            A("v_mov_b32 v255, 0")
            A("s_memrealtime s[92:93]")
        import os
        A("s_memrealtime s[90:91]" if os.environ.get("RT") else "s_memtime s[90:91]")
        A("s_waitcnt lgkmcnt(0)")
        A(f"v_writelane_b32 v255, s90, {self.n}")
        if self.n == 0: A("v_writelane_b32 v255, s92, 62")
        self.n += 1
    def finish(self, v0=250):
        A = self.A
        A("s_waitcnt vmcnt(0)")
        self.n = 61
        self()
        A("s_memrealtime s[94:95]")
        A("s_load_dwordx2 s[100:101], s[0:1], 96")
        A("s_waitcnt lgkmcnt(0)")
        A("v_writelane_b32 v255, s94, 63")
        make_srd(A, 96, 100, 1<<20, (32<<20) + (self.k<<20))
        A(f"v_mbcnt_lo_u32_b32 v{v0}, -1, 0")
        A(f"v_mbcnt_hi_u32_b32 v{v0}, -1, v{v0}")
        A(f"v_lshlrev_b32 v{v0}, 2, v{v0}")
        A(f"s_lshl_b32 s90, s{self.sjob}, 8")
        A(f"buffer_store_dword v255, v{v0}, s[96:99], s90 offen")
```

```python
import sys
from asmlib import *
from parta import *
from partb4 import *
from stamps import *
ST = len(sys.argv) > 1
A = Asm()
descs = []; launches = []
def prologue(ngrid, nw=4):
    A(f"s_cmp_ge_u32 s2, {ngrid}")
    A("s_cbranch_scc1 9f")
    A("v_lshrrev_b32 v1, 6, v0")
    A("s_nop 0")
    A("v_readfirstlane_b32 s3, v1")
    A("v_and_b32 v0, 63, v0")
    A("s_nop 3")
    A(f"s_mul_i32 s4, s2, {nw}")
    A("s_add_u32 s4, s4, s3")
def fin(name, ve, grid, lds, nw=4, sg=102):
    if ST: ve = 256
    A.raw("9:"); A("s_endpgm"); descs.append(kernel_desc(name, ve, sg)); launches.append(f"; @launch kernel={name} grid=({grid},1,1) block=({64*nw},1,1) lds={lds}")
def mk(k):
    if not ST: return None
    S = Stamper(A, k, 4); S(); return S
kernel_begin(A, "k1_kernel"); prologue(256, 8)
S = mk(0)
ve, lds = k1_gemm(A, 3, 0, 8, 2, stamp=S)
if S: S.finish(2)
fin("k1_kernel", ve, 256, lds, 8)
kernel_begin(A, "k2_kernel"); prologue(256, 8)
S = mk(1)
A(f"v_mov_b32 v2, {4*CONV_LDS+6144+128}")
A("v_mov_b32 v3, 0")
A("ds_write_b32 v2, v3")
A("s_waitcnt lgkmcnt(0)")
A("s_barrier")
A("s_cmp_ge_u32 s3, 4")
A("s_cbranch_scc1 Lk2o")
A(f"s_mul_i32 s5, s3, {CONV_LDS}")
A("s_lshl_b32 s6, s2, 2")
A("s_add_u32 s6, s6, s3")
ve1 = conv_job(A, 6, 5, 8, 2, 0, stamp=(lambda i: S()) if S else None)
A("s_branch Lk2e")
A.label("Lk2o")
A("s_sub_u32 s3, s3, 4")
if S: S.n = 1
ve2, lds = k2_o(A, 2, 3, 0, 8, 2, 4*CONV_LDS, stamp=S)
A.label("Lk2e")
if S: S.finish(2)
fin("k2_kernel", max(ve1, ve2), 256, 4*CONV_LDS+lds, 8)
kernel_begin(A, "k3_kernel"); prologue(256, 8)
S = mk(2)
ve, lds, lend = k3_gemm(A, 3, 0, 8, 2, stamp=S)
A.label(lend)
if S: S.finish(2)
fin("k3_kernel", ve, 256, lds, 8)
hdr = "\n".join(launches) + '\n.amdgcn_target "amdgcn-amd-amdhsa--gfx950"\n.text\n'
open("v4st.s" if ST else "v4.s", "w").write(hdr + A.text() + '.section .rodata,"a"\n' + "".join(descs))
open("inter_st.py", "w").write('''
np.set_printoptions(linewidth=250, suppress=True)
for kk in range(3):
    aa = ws[(32<<20)+(kk<<20):(32<<20)+(kk<<20)+2048*256].view(np.uint32).reshape(256, 8, 64).astype(np.int64)
    t0 = aa[:,:,62].min()
    print("kernel", kk, "start spread us", (aa[:,:,62].max()-t0)/100, "last end", (aa[:,:,63].max()-t0)/100, "abs", t0)
    for wv in (0, 4):
        x = aa[:, wv, :62] - aa[:, wv, :1]
        x = np.where(aa[:, wv, :62] == 0, 0, x)
        m = np.median(x, axis=0)
        print("  wave", wv, m[m > 0])
''')
```

```python
from asmlib import *
from parta import WS_KVT, WS_Y2T, MB4, unpack, round2, CSTR, U_OFF, CONV_LDS

class Conv:
    def __init__(self, A, sch, slds, sbase, lane):
        self.A = A; self.sch = sch; self.slds = slds; self.lane = lane
        self.sH, self.sU, self.sD, self.sY = sbase, sbase+4, sbase+8, sbase+12
        self.st = sbase+16
    def setup(self, sP):
        A = self.A
        A(f"s_load_dwordx4 s[{sP}:{sP+3}], s[0:1], 32")
        A(f"s_load_dwordx2 s[{sP+6}:{sP+7}], s[0:1], 96")
        A(f"s_lshl_b32 s{self.st}, s{self.sch}, 12")
        A("s_waitcnt lgkmcnt(0)")
        make_srd(A, self.sH, sP, MB4); make_srd(A, self.sD, sP+2, 2048); make_srd(A, self.sU, sP+6, MB4, WS_KVT); make_srd(A, self.sY, sP+6, MB4, WS_Y2T)
    def h_loads(self, hd, vt):
        A = self.A; st = self.st
        A(f"v_lshlrev_b32 v{vt}, 4, v{self.lane}")
        for i in range(4):
            A(f"s_add_u32 s{st+1}, s{st}, {1024*i}")
            A(f"buffer_load_dwordx4 v[{hd+8*i}:{hd+8*i+3}], v{vt}, s[{self.sH}:{self.sH+3}], s{st+1} offen")
            A(f"buffer_load_dwordx2 v[{hd+8*i+4}:{hd+8*i+5}], v{vt}, s[{self.sH}:{self.sH+3}], s{st+1} offen offset:16")
    def h_build(self, hd, vt, w, younger):
        A = self.A; st = self.st; lane = self.lane
        vE = w+12; vz = w+8
        for j in range(4): A(f"v_mov_b32 v{vz+j}, 0")
        A(f"v_add_u32 v{vE}, s{self.slds}, v{vt}")
        A(f"v_cmp_gt_u32 vcc, 32, v{lane}")
        A(f"s_and_saveexec_b64 s[{st+2}:{st+3}], vcc")
        A(f"ds_write_b128 v{vE}, v[{vz}:{vz+3}] offset:{U_OFF+4096}")
        A(f"v_cmp_gt_u32 vcc, 1, v{lane}")
        A(f"s_and_b64 exec, exec, vcc")
        for sg in range(4):
            A(f"ds_write_b128 v{vE}, v[{vz}:{vz+3}] offset:{sg*CSTR}")
            A(f"ds_write_b64 v{vE}, v[{vz}:{vz+1}] offset:{sg*CSTR+16}")
        A(f"s_waitcnt vmcnt({younger+7})")
        h01, h23 = hd, hd+1
        t0, t1 = w, w+1
        A(f"ds_write_b64 v{vE}, v[{vz}:{vz+1}] offset:24")
        A(f"v_mov_b32 v{t0}, 0")
        A(f"v_lshlrev_b32 v{t1}, 16, v{h01}")
        A(f"ds_write_b64 v{vE}, v[{t0}:{t1}] offset:{CSTR+24}")
        A(f"v_mov_b32 v{t1}, v{h01}")
        A(f"ds_write_b64 v{vE}, v[{t0}:{t1}] offset:{2*CSTR+24}")
        A(f"v_lshlrev_b32 v{t0}, 16, v{h01}")
        A(f"v_alignbyte_b32 v{t1}, v{h23}, v{h01}, 2")
        A(f"ds_write_b64 v{vE}, v[{t0}:{t1}] offset:{3*CSTR+24}")
        A(f"s_mov_b64 exec, s[{st+2}:{st+3}]")
        for i in range(4):
            d = hd + 8*i
            A(f"s_waitcnt vmcnt({younger+6-2*i})")
            A(f"ds_write_b128 v{vE}, v[{d}:{d+3}] offset:{32+1024*i}")
            w1, w2 = w, w+4
            for j in range(4): A(f"v_alignbyte_b32 v{w1+j}, v{d+j+1}, v{d+j}, 2")
            A(f"ds_write_b128 v{vE}, v[{w1}:{w1+3}] offset:{CSTR+32+1024*i}")
            for j in range(4): A(f"v_mov_b32 v{w2+j}, v{d+j+1}")
            A(f"ds_write_b128 v{vE}, v[{w2}:{w2+3}] offset:{2*CSTR+32+1024*i}")
            for j in range(4): A(f"v_alignbyte_b32 v{vz+j}, v{d+j+2}, v{d+j+1}, 2")
            A(f"ds_write_b128 v{vE}, v[{vz}:{vz+3}] offset:{3*CSTR+32+1024*i}")
            A("s_nop 1")
    def u_dma(self, vt):
        A = self.A; st = self.st
        for i in range(4):
            A(f"s_add_u32 m0, s{self.slds}, {U_OFF+1024*i}")
            A(f"s_add_u32 s{st+1}, s{st}, {1024*i}")
            A(f"buffer_load_dwordx4 v{vt}, s[{self.sU}:{self.sU+3}], s{st+1} offen lds")
    def main(self, vbase, mod=""):
        A = self.A; st = self.st; lane = self.lane; sldsbase = self.slds
        v = vbase
        vb, vg, vA, vB, vt, vD, vE, vO = v, v+1, v+2, v+3, v+4, v+5, v+6, v+7
        vacc = v+12; vfr = vacc+32
        A(f"v_mov_b32 v{vD}, s{self.sch}")
        A(f"v_lshlrev_b32 v{vD}, 1, v{vD}")
        A(f"buffer_load_ushort v{vD}, v{vD}, s[{self.sD}:{self.sD+3}], 0 offen")
        A(f"v_and_b32 v{vb}, 15, v{lane}")
        A(f"v_lshrrev_b32 v{vg}, 4, v{lane}")
        A(f"v_add_u32 v{vE}, 1, v{vb}")
        A(f"v_and_b32 v{vA}, 3, v{vE}")
        A(f"v_mul_u32_u24 v{vA}, {CSTR}, v{vA}")
        A(f"v_lshrrev_b32 v{vE}, 2, v{vE}")
        A(f"v_lshl_add_u32 v{vA}, v{vE}, 3, v{vA}")
        A(f"v_lshl_add_u32 v{vA}, v{vg}, 4, v{vA}")
        A(f"v_add_u32 v{vA}, s{sldsbase}, v{vA}")
        A(f"v_lshlrev_b32 v{vB}, 5, v{vb}")
        A(f"v_lshlrev_b32 v{vE}, 4, v{vg}")
        A(f"v_sub_u32 v{vB}, v{vE}, v{vB}")
        A(f"v_add_u32 v{vB}, s{sldsbase}, v{vB}")
        A(f"v_add_u32 v{vB}, {U_OFF+4064-3584}, v{vB}")
        for j in range(32): A(f"v_mov_b32 v{vacc+j}, 0")
        A("s_waitcnt vmcnt(1) lgkmcnt(0)")
        fa = lambda s, m: vfr + s*64 + m*4
        fb = lambda s, q: vfr + s*64 + 32 + q*4
        def loads(r, m):
            s = r % 2
            A(f"ds_read_b64 v[{fa(s,m)}:{fa(s,m)+1}], v{vA} offset:{512*m+64*r}")
            A(f"ds_read_b64 v[{fa(s,m)+2}:{fa(s,m)+3}], v{vA} offset:{512*m+64*r+8}")
            A(f"ds_read_b128 v[{fb(s,m)}:{fb(s,m)+3}], v{vB} offset:{512*(7-m)+64*r}")
        for m in range(8): loads(0, m)
        A("s_waitcnt lgkmcnt(0)")
        for r in range(8):
            s = r % 2; cnt = 0
            for t in range(8):
                for m in range(t+1):
                    A(f"v_mfma_f32_16x16x32_bf16 v[{vacc+4*t}:{vacc+4*t+3}], v[{fa(s,m)}:{fa(s,m)+3}], v[{fb(s,t-m)}:{fb(s,t-m)+3}], v[{vacc+4*t}:{vacc+4*t+3}]")
                    cnt += 1
                    if r < 7 and cnt % 3 == 0 and cnt//3 <= 8: loads(r+1, cnt//3-1)
            if r < 7: A("s_waitcnt lgkmcnt(0)")
        A(f"v_lshlrev_b32 v{vE}, 5, v{vb}")
        A(f"v_lshl_add_u32 v{vE}, v{vg}, 3, v{vE}")
        A(f"v_sub_u32 v{vE}, s{sldsbase}, v{vE}")
        A(f"v_add_u32 v{vE}, {U_OFF+4088-3584}, v{vE}")
        for t in range(8):
            A(f"ds_read_b64 v[{vfr+2*t}:{vfr+2*t+1}], v{vE} offset:{512*(7-t)}")
        A(f"v_lshlrev_b32 v{vO}, 5, v{vb}")
        A(f"v_lshl_add_u32 v{vO}, v{vg}, 3, v{vO}")
        A(f"v_add_u32 v{vO}, s{st}, v{vO}")
        A("s_waitcnt vmcnt(0) lgkmcnt(0)")
        A(f"v_lshlrev_b32 v{vD}, 16, v{vD}")
        A("s_nop 4")
        w = vfr + 16
        for t in range(8):
            y = vacc + 4*t
            ua, ub = vfr+2*t, vfr+2*t+1
            u0, u1, u2, u3, tmp = w, w+1, w+2, w+3, w+4
            unpack(A, u0, ub, 1); unpack(A, u1, ub, 0); unpack(A, u2, ua, 1); unpack(A, u3, ua, 0)
            for j in range(4): A(f"v_mul_f32 v{u0+j}, v{u0+j}, v{vD}")
            round2(A, u0, u1, tmp); round2(A, u2, u3, tmp)
            round2(A, y, y+1, tmp); round2(A, y+2, y+3, tmp)
            for j in range(4): A(f"v_add_f32 v{u0+j}, v{u0+j}, v{y+j}")
            o = w + 6 + 2*t
            A(f"v_cvt_pk_bf16_f32 v{o}, v{u0}, v{u1}")
            A(f"v_cvt_pk_bf16_f32 v{o+1}, v{u2}, v{u3}")
            A(f"buffer_store_dwordx2 v[{o}:{o+1}], v{vO}, s[{self.sY}:{self.sY+3}], 0 offen offset:{512*t}{mod}")
```

```python
from asmlib import *

class Gemm:
    def __init__(self, A, NT, wpitch, sX, sW, sxoff, swoff, swave, lane, sbase, vbase, NSTAGE=3, swapped=(), KT=16, ldsoff=0, stamp=None):
        self.__dict__.update(locals())
        self.STAGE = 16384 + NT*8192
        self.lds = self.STAGE*NSTAGE
        self.nX = 4; self.nW = NT*2; self.ND = self.nX + self.nW
        s = sbase
        self.sT0, self.sT1, self.sXs, self.sLw, self.sM = s, s+1, s+2, s+3, s+4
        self.sMX, self.sMW = self.sM + self.nW, self.sM + self.nW + 1
        self.send = self.sM + self.nW + 2
        v = vbase
        self.vXo = v; self.vWo = v+2; self.vt = v+3
        self.vXa = v+6; self.vWa = self.vXa + 4*NSTAGE
        self.vfr = (self.vWa + NSTAGE + 3)//4*4
        self.FR = (2+NT)*4
        self.vacc = self.vfr + 2*self.FR
        self.acc = [[self.vacc + (t*2+st)*16 for st in range(2)] for t in range(NT)]
        self.vend = self.vacc + NT*32
        self.vfree = self.vfr
        self.vtmp = v
    def emit_loader(self, before_x=None):
        A = self.A; lane = self.lane; vt = self.vt; vXo = self.vXo; vWo = self.vWo
        sT0, sT1, sXs, sLw, sM, sMX, sMW = self.sT0, self.sT1, self.sXs, self.sLw, self.sM, self.sMX, self.sMW
        nX, nW, wpitch = self.nX, self.nW, self.wpitch
        vm = VM(A)
        A(f"v_lshrrev_b32 v{vt}, 3, v{lane}")
        A(f"v_and_b32 v{vt+1}, 7, v{lane}")
        A(f"v_lshrrev_b32 v{vt+2}, 4, v{lane}")
        A(f"v_xor_b32 v{vXo}, v{vt+1}, v{vt+2}")
        A(f"v_xor_b32 v{vXo+1}, 4, v{vXo}")
        for j in range(2):
            A(f"v_lshlrev_b32 v{vXo+j}, 4, v{vXo+j}")
            A(f"v_lshl_add_u32 v{vXo+j}, v{vt}, 11, v{vXo+j}")
        A(f"v_and_b32 v{vt+2}, 2, v{vt}")
        A(f"v_lshlrev_b32 v{vt+2}, 1, v{vt+2}")
        A(f"v_xor_b32 v{vWo}, v{vt+1}, v{vt+2}")
        A(f"v_lshlrev_b32 v{vWo}, 4, v{vWo}")
        A(f"s_mov_b32 s{sT0}, {wpitch}")
        A(f"v_mul_lo_u32 v{vt+2}, v{vt}, s{sT0}")
        A(f"v_add_u32 v{vWo}, v{vWo}, v{vt+2}")
        A(f"s_and_b32 s{sLw}, s{self.swave}, 3")
        A(f"s_mul_i32 s{sT0}, s{sLw}, {nX*8*2048}")
        A(f"s_add_u32 s{sXs}, s{self.sxoff}, s{sT0}")
        A(f"s_mul_i32 s{sMX}, s{sLw}, {nX*1024}")
        A(f"s_mul_i32 s{sMW}, s{sLw}, {nW*1024}")
        for j in range(nW):
            A(f"s_mul_i32 s{sT0}, s{sLw}, {nW}")
            A(f"s_add_u32 s{sT0}, s{sT0}, {j}")
            A(f"s_lshr_b32 s{sT1}, s{sT0}, 3")
            A(f"s_and_b32 s{sT0}, s{sT0}, 7")
            A(f"s_lshl_b32 s{sT1}, s{sT1}, 11")
            A(f"s_mul_i32 s{sT0}, s{sT0}, {8*wpitch}")
            A(f"s_add_u32 s{sM+j}, s{sT0}, s{sT1}")
            A(f"s_add_u32 s{sM+j}, s{sM+j}, s{self.swoff}")
        def dmaX(kt):
            slot = kt % self.NSTAGE
            for i in range(nX):
                A(f"s_add_u32 m0, s{sMX}, {self.ldsoff + slot*self.STAGE + i*1024}")
                A(f"s_add_u32 s{sT1}, s{sXs}, {i*16384 + kt*128}")
                vm.issue(f"buffer_load_dwordx4 v{vXo + (i&1)}, s[{self.sX}:{self.sX+3}], s{sT1} offen lds", ("st", kt))
        def dmaW(kt):
            slot = kt % self.NSTAGE
            for j in range(nW):
                A(f"s_add_u32 m0, s{sMW}, {self.ldsoff + slot*self.STAGE + 16384 + j*1024}")
                A(f"s_add_u32 s{sT1}, s{sM+j}, {kt*64*wpitch}")
                vm.issue(f"buffer_load_dwordx4 v{vWo}, s[{self.sW}:{self.sW+3}], s{sT1} offen lds", ("st", kt))
        PD = self.NSTAGE - 1
        if before_x:
            for kt in range(PD): dmaW(kt)
            before_x()
            vm.q = []
            for kt in range(PD): dmaX(kt)
        else:
            for kt in range(PD): dmaX(kt); dmaW(kt)
        for kt in range(self.KT):
            vm.wait(("st", kt))
            if self.stamp: self.stamp()
            A("s_barrier")
            if kt+PD < self.KT: dmaX(kt+PD); dmaW(kt+PD)
    def emit_compute(self, fillers=None, fill_start=2, per_mfma=2, segs=None):
        A = self.A; lane = self.lane; vt = self.vt; vXa = self.vXa; vWa = self.vWa; sT0 = self.sT0
        NT, NSTAGE, STAGE, KT = self.NT, self.NSTAGE, self.STAGE, self.KT
        vm = VM(A)
        A(f"v_and_b32 v{vt}, 31, v{lane}")
        A(f"v_lshrrev_b32 v{vt+1}, 1, v{vt}")
        A(f"v_and_b32 v{vt+1}, 7, v{vt+1}")
        A(f"v_lshrrev_b32 v{vt+2}, 5, v{lane}")
        A(f"v_xor_b32 v{vt+1}, v{vt+1}, v{vt+2}")
        A(f"s_bfe_u32 s{sT0}, s{self.swave}, 0x10001")
        A(f"s_lshl_b32 s{sT0}, s{sT0}, 13")
        A(f"s_add_u32 s{sT0}, s{sT0}, {self.ldsoff}")
        A(f"v_lshlrev_b32 v{vt}, 7, v{vt}")
        A(f"v_add_u32 v{vt}, s{sT0}, v{vt}")
        for ks in range(4):
            A(f"v_xor_b32 v{vXa+ks}, {2*ks}, v{vt+1}")
            A(f"v_lshl_add_u32 v{vXa+ks}, v{vXa+ks}, 4, v{vt}")
            for sl in range(1, NSTAGE):
                A(f"v_add_u32 v{vXa+4*sl+ks}, {sl*STAGE}, v{vXa+ks}")
        A(f"v_lshrrev_b32 v{vt}, 4, v{lane}")
        A(f"v_and_b32 v{vt+1}, 1, v{vt}")
        A(f"v_lshlrev_b32 v{vt+1}, 1, v{vt+1}")
        A(f"v_bfe_u32 v{vt+2}, v{lane}, 1, 1")
        A(f"v_add_u32 v{vt+1}, v{vt+1}, v{vt+2}")
        A(f"s_and_b32 s{sT0}, s{self.swave}, 1")
        A(f"s_lshl_b32 s{sT0}, s{sT0}, 2")
        A(f"v_add_u32 v{vt+1}, s{sT0}, v{vt+1}")
        A(f"v_bfe_u32 v{vt+2}, v{lane}, 3, 1")
        A(f"v_lshlrev_b32 v{vt+2}, 2, v{vt+2}")
        A(f"v_xor_b32 v{vt+1}, v{vt+1}, v{vt+2}")
        A(f"v_lshlrev_b32 v{vWa}, 4, v{vt+1}")
        A(f"v_and_b32 v{vt+1}, 1, v{lane}")
        A(f"v_lshl_add_u32 v{vWa}, v{vt+1}, 3, v{vWa}")
        A(f"v_lshrrev_b32 v{vt}, 1, v{vt}")
        A(f"v_lshlrev_b32 v{vt}, 3, v{vt}")
        A(f"v_bfe_u32 v{vt+1}, v{lane}, 2, 2")
        A(f"v_add_u32 v{vt}, v{vt}, v{vt+1}")
        A(f"v_lshl_add_u32 v{vWa}, v{vt}, 7, v{vWa}")
        if self.ldsoff: A(f"v_add_u32 v{vWa}, {self.ldsoff}, v{vWa}")
        for sl in range(1, NSTAGE):
            A(f"v_add_u32 v{vWa+sl}, {sl*STAGE}, v{vWa}")
        for j in range(NT*32): A(f"v_mov_b32 v{self.vacc+j}, 0")
        fx = lambda set_, st: self.vfr + set_*self.FR + st*4
        fw = lambda set_, t: self.vfr + set_*self.FR + 8 + t*4
        def read_list(kt, ks):
            slot = kt % NSTAGE; set_ = (kt*4+ks) % 2
            out = []
            for st in range(2):
                out.append(f"ds_read_b128 v[{fx(set_,st)}:{fx(set_,st)+3}], v{vXa+4*slot+ks} offset:{st*4096}")
            for t in range(NT):
                for jh in range(2):
                    out.append(f"ds_read_b64_tr_b16 v[{fw(set_,t)+2*jh}:{fw(set_,t)+2*jh+1}], v{vWa+slot} offset:{16384 + t*8192 + (16*ks+4*jh)*128}")
            return out
        def mfma_list(kt, ks):
            set_ = (kt*4+ks) % 2
            out = []
            for t in range(NT):
                for st in range(2):
                    a = self.acc[t][st]
                    x = f"v[{fx(set_,st)}:{fx(set_,st)+3}]"; w = f"v[{fw(set_,t)}:{fw(set_,t)+3}]"
                    if t in self.swapped: out.append(f"v_mfma_f32_32x32x16_bf16 v[{a}:{a+15}], {x}, {w}, v[{a}:{a+15}]")
                    else:                 out.append(f"v_mfma_f32_32x32x16_bf16 v[{a}:{a+15}], {w}, {x}, v[{a}:{a+15}]")
            return out
        pre = list(fillers[0].items) if fillers else None
        body = list(fillers[1].items) if fillers else None
        if segs is not None: body = []; fill_start = 0
        if pre: play(A, vm, pre)
        A("s_barrier")
        if self.stamp: self.stamp()
        for r in read_list(0, 0): A(r)
        for kt in range(KT):
            if self.stamp and kt > 0: self.stamp()
            if segs and kt in segs: body += list(segs[kt].items)
            for ks in range(4):
                A("s_waitcnt lgkmcnt(0)")
                rl = []
                if ks < 3: rl = read_list(kt, ks+1)
                elif kt+1 < KT:
                    A("s_barrier")
                    rl = read_list(kt+1, 0)
                ml = mfma_list(kt, ks)
                rper = -(-len(rl) // max(1, len(ml)-2)) if len(ml) > 2 else len(rl)
                for m in ml:
                    A(m)
                    for _ in range(rper):
                        if rl: A(rl.pop(0))
                    if body and kt >= fill_start: play(A, vm, body, per_mfma)
        if body: play(A, vm, body)
        if self.stamp: self.stamp()
```

```python
from asmlib import *
class Stamper:
    def __init__(self, A, kidx, sjob):
        self.A = A; self.k = kidx; self.n = 0; self.sjob = sjob
    def __call__(self, wait=True):
        A = self.A
        if self.n == 0:
            A("v_mov_b32 v255, 0")
            A("s_memrealtime s[94:95]")
            A("s_waitcnt lgkmcnt(0)")
            A("v_writelane_b32 v255, s94, 62")
        import os
        A("s_memrealtime s[92:93]" if os.environ.get("RT") else "s_memtime s[92:93]")
        A("s_waitcnt lgkmcnt(0)")
        A(f"v_writelane_b32 v255, s92, {self.n}")
        self.n += 1
    def finish(self, v0=250):
        A = self.A
        A("s_waitcnt vmcnt(0)")
        self.n = 61
        self()
        A("s_memrealtime s[94:95]")
        A("s_load_dwordx2 s[100:101], s[0:1], 96")
        A("s_waitcnt lgkmcnt(0)")
        A("v_writelane_b32 v255, s94, 63")
        make_srd(A, 96, 100, 1<<20, (32<<20) + (self.k<<20))
        A(f"v_mbcnt_lo_u32_b32 v{v0}, -1, 0")
        A(f"v_mbcnt_hi_u32_b32 v{v0}, -1, v{v0}")
        A(f"v_lshlrev_b32 v{v0}, 2, v{v0}")
        A(f"s_lshl_b32 s92, s{self.sjob}, 8")
        A(f"buffer_store_dword v255, v{v0}, s[96:99], s92 offen")
```

```python
import sys, os
from asmlib import *
from parta import WS_KVT, WS_Y2T, WS_Q, WS_O, WS_ST, MB4, unpack, round2, conv_job, CONV_LDS
from parta2 import apre_rec, apost_rec
from partb import xhalf, wg_map, wphi_addr, wphi_reads, LOG2E, ST_SZ
from partb4 import featmap, NPART
from gemm4 import Gemm
from conv2 import Conv
from stamps import Stamper

ST = len(sys.argv) > 1 and sys.argv[1] == "st"
A = Asm()
KN = "concat_heads__ssm_conv_h3__linear_kernel_hedgehog__prompt_kernel"
LDS_TOTAL = 163840
CNT1, CNT2 = LDS_TOTAL-64, LDS_TOTAL-60
C_S, C_O, C_Y, C_A = 0, 16, 32, 48
WS_CNT = 24 << 20
sDBG = 8
CNT3, CNT4, CNT5, CNT6 = LDS_TOTAL-56, LDS_TOTAL-52, LDS_TOTAL-48, LDS_TOTAL-44
lane = 0; swave = 3

def store_tile(A, a, o, vaddr, srd, mod=""):
    for gq in range(4):
        A(f"v_cvt_pk_bf16_f32 v{o+2*gq}, v{a+4*gq}, v{a+4*gq+1}")
        A(f"v_cvt_pk_bf16_f32 v{o+2*gq+1}, v{a+4*gq+2}, v{a+4*gq+3}")
    A("s_nop 1")
    for pr in range(2):
        A(f"v_permlane32_swap_b32 v{o+4*pr}, v{o+4*pr+2}")
        A(f"v_permlane32_swap_b32 v{o+4*pr+1}, v{o+4*pr+3}")
    for pr in range(2):
        A(f"buffer_store_dwordx4 v[{o+4*pr}:{o+4*pr+3}], v{vaddr}, s[{srd}:{srd+3}], 0 offen offset:{32*pr}{mod}")

def signal(A, sidx, base, va, vb):
    A(f"s_lshl_b32 s5, s{sidx}, 8")
    A(f"s_add_u32 s5, s5, {256*base}")
    A(f"v_mov_b32 v{va}, s5")
    A(f"v_mov_b32 v{vb}, 1")
    A("s_mov_b64 exec, 1")
    A(f"buffer_atomic_add v{vb}, v{va}, s[{sDBG}:{sDBG+3}], 0 offen sc1")
    A("s_mov_b64 exec, -1")

def poll(A, sidx, base, target, va, vb, name, srd=None):
    sDBG = srd if srd is not None else 8
    if sidx is None:
        A(f"v_mov_b32 v{va}, 0")
    else:
        A(f"s_lshl_b32 s5, s{sidx}, 8")
        A(f"s_add_u32 s5, s5, {256*base}")
        A(f"v_mov_b32 v{va}, s5")
    A("s_mov_b32 s99, 0")
    A(f"{name}:")
    A(f"buffer_load_dword v{vb}, v{va}, s[{sDBG}:{sDBG+3}], 0 offen sc1")
    A("s_waitcnt vmcnt(0)")
    A(f"v_readfirstlane_b32 s5, v{vb}")
    A("s_nop 3")
    A(f"s_cmp_ge_u32 s5, {target}")
    A(f"s_cbranch_scc1 {name}_done")
    A("s_sleep 2")
    A("s_add_u32 s99, s99, 1")
    A("s_cmp_lt_u32 s99, 0x40000")
    A(f"s_cbranch_scc1 {name}")
    A(f"{name}_done:")

def lds_arrive(A, cnt, va, vb):
    A(f"v_mov_b32 v{va}, {cnt}")
    A(f"v_mov_b32 v{vb}, 1")
    A("s_mov_b64 exec, 1")
    A(f"ds_add_u32 v{va}, v{vb}")
    A("s_mov_b64 exec, -1")
def lds_wait(A, cnt, target, va, vb, name):
    A(f"v_mov_b32 v{va}, {cnt}")
    A("s_mov_b32 s99, 0")
    A(f"{name}:")
    A(f"ds_read_b32 v{vb}, v{va}")
    A("s_waitcnt lgkmcnt(0)")
    A(f"v_readfirstlane_b32 s5, v{vb}")
    A("s_add_u32 s99, s99, 1")
    A("s_cmp_ge_u32 s99, 0x400000")
    A(f"s_cbranch_scc1 {name}_done")
    A(f"s_cmp_lt_u32 s5, {target}")
    A(f"s_cbranch_scc1 {name}")
    A(f"{name}_done:")

kernel_begin(A, KN)
A("s_cmp_ge_u32 s2, 256")
A("s_cbranch_scc1 Lexit")
A("v_lshrrev_b32 v1, 6, v0")
A("s_nop 0")
A("v_readfirstlane_b32 s3, v1")
A("v_and_b32 v0, 63, v0")
A("s_nop 3")
A("s_lshl_b32 s4, s2, 3")
A("s_add_u32 s4, s4, s3")
S = None
if ST:
    S = Stamper(A, 0, 4); S()
s = 12
sX, sW, sPH, sS = s, s+4, s+8, s+12
sP = s+16
sxo, swo, st0, shead, sc, st1 = s+24, s+25, s+26, s+27, s+28, s+29
srb, shp = 6, 7
A(f"s_load_dwordx4 s[{sP}:{sP+3}], s[0:1], 48")
A(f"s_load_dwordx2 s[{sP+4}:{sP+5}], s[0:1], 64")
A(f"s_load_dwordx4 s[{sX}:{sX+3}], s[0:1], 88")
wg_map(A, srb, shp, st0)
A(f"s_lshl_b32 s{sxo}, s{srb}, 18")
A(f"s_lshl_b32 s{swo}, s{shp}, 7")
A(f"s_and_b32 s{st0}, s{swave}, 1")
A(f"s_lshl_b32 s{shead}, s{shp}, 1")
A(f"s_add_u32 s{shead}, s{shead}, s{st0}")
A(f"s_mov_b32 s{sc}, {LOG2E}")
A(f"v_mov_b32 v2, {CNT1}")
for j in range(4): A(f"v_mov_b32 v{4+j}, 0")
A("ds_write_b128 v2, v[4:7]")
A("ds_write_b128 v2, v[4:7] offset:16")
A("s_waitcnt lgkmcnt(0)")
make_srd(A, 88, sX, 256)
A(f"s_mov_b32 s{sP+6}, s{sX+2}"); A(f"s_mov_b32 s{sP+7}, s{sX+3}")
make_srd(A, sDBG, sP+6, 64*256, WS_CNT)
A("s_cmp_lg_u32 s4, 7")
A("s_cbranch_scc1 Lnoinit")
A("v_lshlrev_b32 v2, 8, v0")
A(f"buffer_store_dword v4, v2, s[{sDBG}:{sDBG+3}], 0 offen sc1")
A("s_waitcnt vmcnt(0)")
A("v_mov_b32 v2, 0"); A("v_mov_b32 v3, 1")
A("s_mov_b64 exec, 1")
A("buffer_store_dword v3, v2, s[88:91], 0 offen sc1")
A("s_mov_b64 exec, -1")
A.label("Lnoinit")
make_srd(A, sX, sP, MB4); make_srd(A, sW, sP+2, 6<<20); make_srd(A, sPH, sP+4, 65536)
make_srd(A, sS, sP+6, 32*NPART*ST_SZ, WS_ST)
PH_OFF = 3*(16384+3*8192)
HO_OFF = PH_OFF + 4096
R2 = 90112; R3 = R2 + 16384
g = Gemm(A, 3, 6144, sX, sW, sxo, swo, swave, lane, s+30, 2, 3, swapped=(2,), stamp=None)
assert g.send <= 56, g.send
e = 160; assert g.vend <= e
P, EP, PHI, TD, PHIQ = e, e+16, e+32, e+48, e+64
f = g.vfree
ID = f; WF = f+8; t = f+16; ZS = f+24; va = f+26
hi = va+1
Qs, Ks, Vs = g.acc
Q, K, V = Qs[0], Ks[0], Vs[0]
A("s_cmp_ge_u32 s3, 4")
A("s_cbranch_scc1 Lp1_loader")
A(f"v_lshlrev_b32 v2, 4, v0")
A(f"s_lshl_b32 s{st0}, s{swave}, 10")
A(f"s_add_u32 m0, s{st0}, {PH_OFF}")
A(f"s_lshl_b32 s{st1}, s{shp}, 12")
A(f"s_add_u32 s{st0}, s{st0}, s{st1}")
A(f"buffer_load_dwordx4 v2, s[{sPH}:{sPH+3}], s{st0} offen lds")
sJ = 56
A(f"s_lshl_b32 s{sJ}, s2, 2")
A(f"s_add_u32 s{sJ}, s{sJ}, s{swave}")
Pp, Bb, vend_f, _ = apre_rec(sJ, 60, 160, lane, 4, mod=" sc1")
assert vend_f <= 254
g.emit_compute(fillers=(Pp, Bb), fill_start=3, per_mfma=2)
A(f"v_lshlrev_b32 v{va+3}, 4, v{lane}")
A(f"s_mul_i32 s{st0}, s{swave}, 6144")
A(f"s_add_u32 s{st0}, s{st0}, {HO_OFF}")
A(f"v_add_u32 v{va+4}, s{st0}, v{va+3}")
A("s_nop 7")
for X in (Ks, Vs, Qs):
    for i in range(8): A(f"v_cvt_pk_bf16_f32 v{X[1]+i}, v{X[1]+2*i}, v{X[1]+2*i+1}")
for n, X in enumerate((Ks, Vs, Qs)):
    for j in range(2): A(f"ds_write_b128 v{va+4}, v[{X[1]+4*j}:{X[1]+4*j+3}] offset:{2048*n+1024*j}")
for X in (Ks, Vs, Qs):
    for i in range(8): A(f"v_cvt_pk_bf16_f32 v{X[0]+i}, v{X[0]+2*i}, v{X[0]+2*i+1}")
A("s_waitcnt vmcnt(0) lgkmcnt(0)")
A("s_barrier")
A("s_branch Lp1_epi")
A.label("Lp1_loader")
if S: S.n = 1
g.emit_loader()
A("s_barrier")
A(f"v_lshlrev_b32 v{va+3}, 4, v{lane}")
A(f"s_sub_u32 s{st0}, s{swave}, 4")
A(f"s_mul_i32 s{st0}, s{st0}, 6144")
A(f"s_add_u32 s{st0}, s{st0}, {HO_OFF}")
A(f"v_add_u32 v{va+4}, s{st0}, v{va+3}")
for n, X in enumerate((Ks, Vs, Qs)):
    for j in range(2): A(f"ds_read_b128 v[{X[0]+4*j}:{X[0]+4*j+3}], v{va+4} offset:{2048*n+1024*j}")
A.label("Lp1_epi")
if S: S.n = 30; S()
A(f"v_lshrrev_b32 v{hi}, 5, v{lane}")
wphi_addr(A, va, lane, t, False)
A(f"s_and_b32 s{st0}, s{swave}, 1")
A(f"s_lshl_b32 s{st0}, s{st0}, 11")
A(f"s_add_u32 s{st0}, s{st0}, {PH_OFF}")
A(f"v_add_u32 v{va}, s{st0}, v{va}")
wphi_reads(A, WF, va, 0, False)
A(f"v_and_b32 v{t}, 31, v{lane}")
A(f"v_lshlrev_b32 v{t+1}, 2, v{hi}")
A(f"v_sub_u32 v{t}, v{t}, v{t+1}")
A(f"v_mov_b32 v{t+2}, 0x3f80")
A(f"v_mov_b32 v{t+3}, 0x3f800000")
for k in range(2):
    for i in range(4):
        j = 2*i
        f0 = 16*k + 8*(j//4) + j%4
        A(f"v_cmp_eq_u32 vcc, {f0}, v{t}")
        A(f"v_cmp_eq_u32 s[{sP}:{sP+1}], {f0+1}, v{t}")
        A("s_nop 0")
        A(f"v_cndmask_b32 v{ID+4*k+i}, 0, v{t+2}, vcc")
        A(f"v_cndmask_b32 v{t+1}, 0, v{t+3}, s[{sP}:{sP+1}]")
        A(f"v_or_b32 v{ID+4*k+i}, v{ID+4*k+i}, v{t+1}")
A("s_waitcnt lgkmcnt(0)")
featmap(A, K, K+4, WF, WF+4, P, EP, t, PHI, sc)
A("s_nop 1")
for sg, D in ((0, TD), (1, P)):
    A(f"v_mfma_f32_32x32x16_bf16 v[{D}:{D+15}], v[{PHI+8*sg}:{PHI+8*sg+3}], v[{ID}:{ID+3}], 0")
    A(f"v_mfma_f32_32x32x16_bf16 v[{D}:{D+15}], v[{PHI+8*sg+4}:{PHI+8*sg+7}], v[{ID+4}:{ID+7}], v[{D}:{D+15}]")
A("s_nop 7"); A("s_nop 4")
for sg, D in ((0, TD), (1, P)):
    for i in range(8): A(f"v_cvt_pk_bf16_f32 v{EP+8*sg+i}, v{D+2*i}, v{D+2*i+1}")
A("s_nop 1")
KVA = [Ks[1], PHI]
for sg in range(2):
    a = KVA[sg]
    A(f"v_mfma_f32_32x32x16_bf16 v[{a}:{a+15}], v[{EP+8*sg}:{EP+8*sg+3}], v[{V}:{V+3}], 0")
    A(f"v_mfma_f32_32x32x16_bf16 v[{a}:{a+15}], v[{EP+8*sg+4}:{EP+8*sg+7}], v[{V+4}:{V+7}], v[{a}:{a+15}]")
for sg, D in ((0, TD), (1, P)):
    A(f"v_add_f32 v{ZS+sg}, v{D}, v{D+1}")
    for i in range(2, 16): A(f"v_add_f32 v{ZS+sg}, v{ZS+sg}, v{D+i}")
xhalf(A, "v_add_f32", ZS, t, t+1)
xhalf(A, "v_add_f32", ZS+1, t, t+1)
A(f"v_cmp_gt_u32 vcc, 32, v{lane}")
A("s_nop 1")
A(f"v_cndmask_b32 v{ZS}, v{ZS+1}, v{ZS}, vcc")
A(f"s_mul_i32 s{st0}, s{swave}, {9*1024}")
A(f"v_add_u32 v{va+4}, s{st0}, v{va+3}")
for sg in range(2):
    for gq in range(4):
        a = KVA[sg] + 4*gq
        A(f"ds_write_b128 v{va+4}, v[{a}:{a+3}] offset:{(sg*4+gq)*1024}")
A(f"ds_write_b32 v{va+4}, v{ZS} offset:{8*1024}")
A("s_waitcnt lgkmcnt(0)")
A("s_barrier")
A(f"s_and_b32 s{st0}, s{swave}, 1")
A(f"s_mul_i32 s{st0}, s{st0}, {9*1024}")
A(f"s_lshr_b32 s{st1}, s{swave}, 1")
A(f"s_lshl_b32 s5, s{st1}, 11")
A(f"s_add_u32 s{st0}, s{st0}, s5")
A(f"v_add_u32 v{va+4}, s{st0}, v{va+3}")
R = P
for src in range(4):
    for gg in range(2):
        r = R + (src*2+gg)*4
        A(f"ds_read_b128 v[{r}:{r+3}], v{va+4} offset:{src*2*9*1024 + gg*1024}")
A(f"s_and_b32 s{st0}, s{swave}, 1")
A(f"s_mul_i32 s{st0}, s{st0}, {9*1024}")
A(f"v_add_u32 v{va+5}, s{st0}, v{va+3}")
for src in range(4):
    A(f"ds_read_b32 v{t+src}, v{va+5} offset:{src*2*9*1024 + 8*1024}")
A(f"s_lshl_b32 s{st0}, s{shead}, 4")
A(f"s_add_u32 s{st0}, s{st0}, s{srb}")
A(f"s_mul_i32 s{st0}, s{st0}, {ST_SZ}")
A(f"s_lshl_b32 s5, s{st1}, 11")
A(f"s_add_u32 s5, s5, s{st0}")
A("s_waitcnt lgkmcnt(0)")
for gg in range(2):
    for j in range(4):
        r = R + gg*4 + j
        A(f"v_add_f32 v{r}, v{r}, v{r+8}")
        A(f"v_add_f32 v{r+16}, v{r+16}, v{r+24}")
        A(f"v_add_f32 v{r}, v{r}, v{r+16}")
    A(f"buffer_store_dwordx4 v[{R+gg*4}:{R+gg*4+3}], v{va+3}, s[{sS}:{sS+3}], s5 offen offset:{1024*gg} sc1")
A(f"s_cmp_lg_u32 s{st1}, 0")
A(f"s_cbranch_scc1 Lnoz")
A(f"v_add_f32 v{t}, v{t}, v{t+1}")
A(f"v_add_f32 v{t+2}, v{t+2}, v{t+3}")
A(f"v_add_f32 v{t}, v{t}, v{t+2}")
A(f"v_lshlrev_b32 v{va+5}, 2, v{lane}")
A(f"s_add_u32 s{st0}, s{st0}, 8192")
A(f"buffer_store_dword v{t}, v{va+5}, s[{sS}:{sS+3}], s{st0} offen sc1")
A.label("Lnoz")
if S: S()
A("s_waitcnt vmcnt(0)")
A("s_barrier")
A("s_cmp_lg_u32 s3, 4")
A("s_cbranch_scc1 Lnosig")
poll(A, None, 0, 1, va+4, va+5, "Lpoll_r1", srd=88)
signal(A, shp, C_S, va+4, va+5)
A(f"s_and_b32 s{st1}, s2, 3")
signal(A, st1, C_A, va+4, va+5)
A.label("Lnosig")
CV = Conv(A, 57, 58, 60, lane)
A("s_and_b32 s57, s3, 3")
A(f"s_mul_i32 s58, s57, {CONV_LDS}")
A("s_lshl_b32 s59, s2, 2")
A("s_add_u32 s57, s57, s59")
CV.setup(80)
featmap(A, Q, Q+4, WF, WF+4, TD, PHI, t, PHIQ, sc)
if S: S()
A("s_cmp_lg_u32 s3, 4")
A("s_cbranch_scc1 Low")
poll(A, shp, C_S, 16, va+4, va+5, "Lpoll_s")
lds_arrive(A, CNT5, va+4, va+5)
A(f"s_lshr_b32 s{st1}, s2, 6")
poll(A, st1, C_A, 64, va+4, va+5, "Lpoll_a")
lds_arrive(A, CNT3, va+4, va+5)
A.label("Low")
A("s_cmp_ge_u32 s3, 4")
A("s_cbranch_scc1 Lnohl")
CV.h_loads(192, 2)
A.label("Lnohl")
lds_wait(A, CNT5, 1, va+4, va+5, "Lw5")
if S: S()
LD = Qs[0]
assert LD + 128 <= PHIQ
A(f"s_lshr_b32 s{st0}, s{swave}, 1")
A(f"s_mul_i32 s{st1}, s{shead}, {NPART*ST_SZ}")
A(f"s_lshl_b32 s5, s{st0}, 11")
A(f"s_add_u32 s{st1}, s{st1}, s5")
for p in range(NPART):
    A(f"s_add_u32 s5, s{st1}, {p*ST_SZ}")
    for gq in range(2):
        A(f"buffer_load_dwordx4 v[{LD+8*p+4*gq}:{LD+8*p+4*gq+3}], v{va+3}, s[{sS}:{sS+3}], s5 offen offset:{1024*gq}")
ZL = ID
A(f"s_cmp_lg_u32 s{st0}, 0")
A(f"s_cbranch_scc1 Lnozl0")
A(f"v_lshrrev_b32 v{t}, 4, v{lane}")
A(f"s_mov_b32 s5, {ST_SZ}")
A(f"v_mul_lo_u32 v{t}, v{t}, s5")
A(f"v_and_b32 v{t+1}, 15, v{lane}")
A(f"v_lshl_add_u32 v{t}, v{t+1}, 4, v{t}")
A(f"s_mul_i32 s{st1}, s{shead}, {NPART*ST_SZ}")
for b in range(4):
    A(f"s_add_u32 s5, s{st1}, {4*b*ST_SZ + 8192}")
    A(f"buffer_load_dwordx4 v[{ZL+4*b}:{ZL+4*b+3}], v{t}, s[{sS}:{sS+3}], s5 offen")
A.label("Lnozl0")
A("s_cmp_ge_u32 s3, 4")
A("s_cbranch_scc1 Lnohb")
CV.h_build(192, 2, 4, 32)
A.label("Lnohb")
for p in range(1, NPART):
    A(f"s_waitcnt vmcnt({2*(NPART-1-p)})")
    for j in range(8): A(f"v_add_f32 v{LD+j}, v{LD+j}, v{LD+8*p+j}")
for i in range(4): A(f"v_cvt_pk_bf16_f32 v{LD+8+i}, v{LD+2*i}, v{LD+2*i+1}")
A(f"s_and_b32 s5, s{swave}, 1")
A(f"s_mul_i32 s5, s5, 4352")
A(f"s_add_u32 s5, s5, {R3}")
A(f"v_add_u32 v{va+5}, s5, v{va+3}")
A(f"s_lshl_b32 s5, s{st0}, 10")
A(f"v_add_u32 v{va+4}, s5, v{va+5}")
A(f"ds_write_b128 v{va+4}, v[{LD+8}:{LD+11}]")
A(f"s_cmp_lg_u32 s{st0}, 0")
A(f"s_cbranch_scc1 Lnozl")
for j in range(4):
    A(f"v_add_f32 v{ZL+j}, v{ZL+j}, v{ZL+4+j}")
    A(f"v_add_f32 v{ZL+8+j}, v{ZL+8+j}, v{ZL+12+j}")
    A(f"v_add_f32 v{ZL+j}, v{ZL+j}, v{ZL+8+j}")
for j in range(4):
    xhalf(A, "v_add_f32", ZL+j, t+5, t+6)
    A(f"v_mov_b32 v{t+5}, v{ZL+j}")
    A(f"v_mov_b32 v{t+6}, v{ZL+j}")
    A("s_nop 1")
    A(f"v_permlane16_swap_b32 v{t+5}, v{t+6}")
    A("s_nop 1")
    A(f"v_add_f32 v{ZL+j}, v{t+5}, v{t+6}")
A(f"v_cvt_pk_bf16_f32 v{t}, v{ZL}, v{ZL+1}")
A(f"v_cvt_pk_bf16_f32 v{t+1}, v{ZL+2}, v{ZL+3}")
A(f"v_and_b32 v{t+2}, 15, v{lane}")
A(f"v_lshlrev_b32 v{t+2}, 3, v{t+2}")
A(f"s_and_b32 s5, s{swave}, 1")
A(f"s_mul_i32 s5, s5, 4352")
A(f"s_add_u32 s5, s5, {R3+4096}")
A(f"v_add_u32 v{t+2}, s5, v{t+2}")
A(f"ds_write_b64 v{t+2}, v[{t}:{t+1}]")
A.label("Lnozl")
A("s_cmp_ge_u32 s3, 4")
A("s_cbranch_scc1 Lnoud")
lds_wait(A, CNT3, 1, 4, 5, "Lw3")
CV.u_dma(2)
A.label("Lnoud")
A("s_waitcnt lgkmcnt(0)")
A("s_barrier")
if S: S()
KF = LD; ZF = LD+16; NUM = LD+32; DEN = LD+48; OB = LD+64
A(f"s_and_b32 s5, s{swave}, 1")
A(f"s_mul_i32 s5, s5, 4352")
A(f"s_add_u32 s5, s5, {R3+4096}")
A(f"v_lshlrev_b32 v{t+2}, 3, v{hi}")
A(f"v_add_u32 v{t+2}, s5, v{t+2}")
for k in range(4):
    A(f"ds_read_b128 v[{KF+4*k}:{KF+4*k+3}], v{va+5} offset:{1024*k}")
    A(f"ds_read_b64 v[{ZF+4*k}:{ZF+4*k+1}], v{t+2} offset:{32*k}")
    A(f"ds_read_b64 v[{ZF+4*k+2}:{ZF+4*k+3}], v{t+2} offset:{32*k+16}")
make_srd(A, sX, sP+6, MB4, WS_O)
A(f"s_bfe_u32 s5, s{swave}, 0x10001")
A(f"s_lshl_b32 s5, s5, 17")
A(f"s_add_u32 s5, s5, s{sxo}")
A(f"s_lshr_b32 s{st1}, s{swave}, 2")
A(f"s_lshl_b32 s{st1}, s{st1}, 16")
A(f"s_add_u32 s5, s5, s{st1}")
A(f"s_lshl_b32 s{st1}, s{shead}, 6")
A(f"s_add_u32 s5, s5, s{st1}")
A(f"v_and_b32 v{va+2}, 31, v{lane}")
A(f"v_lshlrev_b32 v{va+2}, 11, v{va+2}")
A(f"v_lshl_add_u32 v{va+2}, v{hi}, 4, v{va+2}")
A(f"v_add_u32 v{va+2}, s5, v{va+2}")
A(f"s_mov_b32 s{st1}, 0x358637bd")
A("s_waitcnt lgkmcnt(0)")
PH = PHIQ
for k in range(4):
    c0 = "0" if k == 0 else f"v[{NUM}:{NUM+15}]"
    A(f"v_mfma_f32_32x32x16_bf16 v[{NUM}:{NUM+15}], v[{KF+4*k}:{KF+4*k+3}], v[{PH+4*k}:{PH+4*k+3}], {c0}")
for k in range(4):
    c0 = "0" if k == 0 else f"v[{DEN}:{DEN+15}]"
    A(f"v_mfma_f32_32x32x16_bf16 v[{DEN}:{DEN+15}], v[{ZF+4*k}:{ZF+4*k+3}], v[{PH+4*k}:{PH+4*k+3}], {c0}")
A("s_nop 7"); A("s_nop 4")
A(f"v_mov_b32 v{t+1}, s{st1}")
round2(A, DEN, t+1, t)
A(f"v_add_f32 v{DEN}, v{DEN}, v{t+1}")
round2(A, DEN, t+1, t)
A(f"v_rcp_f32 v{DEN}, v{DEN}")
for i in range(8): round2(A, NUM+2*i, NUM+2*i+1, t)
for i in range(16): A(f"v_mul_f32 v{NUM+i}, v{NUM+i}, v{DEN}")
store_tile(A, NUM, OB, va+2, sX, " sc1")
A("s_waitcnt vmcnt(0)")
A("s_barrier")
if S: S()
def g2_setup():
    A(f"s_load_dwordx4 s[28:31], s[0:1], 72")
    A(f"s_load_dwordx2 s[32:33], s[0:1], 96")
    A(f"s_lshl_b32 s24, s{srb}, 18")
    A(f"s_lshl_b32 s25, s{shp}, 7")
    A("s_waitcnt lgkmcnt(0)")
    make_srd(A, 12, 32, MB4, WS_O); make_srd(A, 16, 28, 2<<20); make_srd(A, 20, 30, 2*MB4)
g2 = Gemm(A, 1, 2048, 12, 16, 24, 25, swave, lane, 36, 2, 3, ldsoff=4*CONV_LDS, stamp=S)
assert 4*CONV_LDS + g2.lds <= CNT1 and g2.send <= 50
A("s_cmp_ge_u32 s3, 4")
A("s_cbranch_scc1 Lp3_loader")
CV.main(2, " sc1")
A("s_waitcnt vmcnt(0)")
lds_arrive(A, CNT4, 2, 3)
A("s_cmp_lg_u32 s3, 0")
A("s_cbranch_scc1 Lcy")
lds_wait(A, CNT4, 4, 2, 3, "Lw4")
A("s_lshr_b32 s12, s2, 4")
signal(A, 12, C_Y, 2, 3)
A.label("Lcy")
if S: S()
g2_setup()
A("s_lshl_b32 s52, s2, 2")
A("s_add_u32 s52, s52, s3")
Pp, Bb, vend_f, _ = apost_rec(52, 56, 104, lane)
sg1 = Rec(); sg1.items = Pp.items[:Pp.split]
sg2 = Rec()
sg2("s_and_b32 s53, s52, 15")
sg2(f"s_lshl_b32 s5, s53, 8")
sg2(f"s_add_u32 s5, s5, {256*C_Y}")
sg2("v_mov_b32 v100, s5")
sg2.vm(f"buffer_load_dword v101, v100, s[{sDBG}:{sDBG+3}], 0 offen sc1", "pl")
sg3 = Rec()
sg3.wait("pl")
tmpA = Asm()
tmpA("v_readfirstlane_b32 s5, v101"); tmpA("s_nop 3"); tmpA("s_cmp_ge_u32 s5, 16"); tmpA("s_cbranch_scc1 Lpoll_y_done")
poll(tmpA, 53, C_Y, 16, 100, 101, "Lpoll_y")
sg3.items.append(("i", "\n".join(l.strip() for l in tmpA.lines)))
sg3.items += Pp.items[Pp.split:]
g2.emit_compute(segs={1: sg1, 6: sg2, 9: sg3, 13: Bb}, per_mfma=6)
if S: S()
e2 = g2.vend; v2 = g2.vtmp
A(f"s_bfe_u32 s26, s3, 0x10001")
A(f"s_lshl_b32 s26, s26, 18")
A(f"s_lshl_b32 s24, s{srb}, 19")
A(f"s_add_u32 s26, s26, s24")
A(f"s_add_u32 s26, s26, s25")
A(f"s_and_b32 s24, s3, 1")
A(f"s_lshl_b32 s24, s24, 6")
A(f"s_add_u32 s26, s26, s24")
A(f"s_add_u32 s26, s26, 2048")
A(f"v_and_b32 v{v2}, 31, v{lane}")
A(f"v_lshlrev_b32 v{v2}, 12, v{v2}")
A(f"v_lshrrev_b32 v{v2+1}, 5, v{lane}")
A(f"v_lshl_add_u32 v{v2}, v{v2+1}, 4, v{v2}")
A(f"v_add_u32 v{v2}, s26, v{v2}")
A(f"v_add_u32 v{v2+1}, 0x20000, v{v2}")
A("s_nop 7"); A("s_nop 4")
for st in range(2): store_tile(A, g2.acc[0][st], e2 + 8*st, v2+st, 20)
A("s_branch Ldone")
A.label("Lp3_loader")
if S: S.n = 36
A("s_cmp_lg_u32 s3, 4")
A("s_cbranch_scc1 Lnso")
signal(A, srb, C_O, 100, 101)
A.label("Lnso")
g2_setup()
def before_x():
    A("s_cmp_lg_u32 s3, 4")
    A("s_cbranch_scc1 Lxw")
    poll(A, srb, C_O, 16, 100, 101, "Lpoll_o")
    lds_arrive(A, CNT6, 100, 101)
    A.label("Lxw")
    lds_wait(A, CNT6, 1, 100, 101, "Lw7")
    A("s_waitcnt vmcnt(0)")
    if S: S()
g2.emit_loader(before_x=before_x)
A.label("Ldone")
if S: S.finish(2)
A.label("Lexit")
A("s_endpgm")
hdr = f"; @launch grid=(256,1,1) block=(512,1,1) lds={LDS_TOTAL}\n" + '.amdgcn_target "amdgcn-amd-amdhsa--gfx950"\n.text\n'
open("mega3st.s" if ST else "mega3.s", "w").write(hdr + A.text() + '.section .rodata,"a"\n' + kernel_desc(KN, 256, 102))
open("inter_mega.py", "w").write('''
np.set_printoptions(linewidth=250, suppress=True)
aa = ws[(32<<20):(32<<20)+2048*256].view(np.uint32).reshape(256, 8, 64).astype(np.int64)
t0 = aa[:,:,62].min()
print("start spread us", (aa[:,:,62].max()-t0)/100, "last end", (aa[:,:,63].max()-t0)/100)
for wv in (0, 4):
    x = aa[:, wv, :62] - aa[:, wv, :1]
    x = np.where(aa[:, wv, :62] == 0, 0, x)
    m = np.median(x, axis=0)
    print("  wave", wv, m[m > 0])
''')
```
